```python
import torch

def _softmax(x, axis=-1):
    return torch.softmax(x, dim=axis)
def _gelu(x):
    return torch.nn.functional.gelu(x, approximate="tanh")
def _silu(x):
    return torch.nn.functional.silu(x)
def _sigmoid(x):
    return torch.sigmoid(x)
def _layernorm(x, axis=-1, eps=1e-5):
    m = x.mean(dim=axis, keepdim=True)
    v = x.var(dim=axis, keepdim=True, unbiased=False)
    return (x - m) / torch.sqrt(v + eps)
def _scatter_add(tgt, idx, src, axis=0):
    return tgt.clone().index_add_(axis, idx, src)
def _segment_sum(src, seg, n):
    out = torch.zeros((n,) + src.shape[1:], dtype=src.dtype)
    return out.index_add_(0, seg, src)
def _pad(x, pw):
    flat = tuple(v for pair in reversed(pw) for v in pair)
    return torch.nn.functional.pad(x, flat)

kernel_name = 'standalone__deepnorm__prompt'

def setup_inputs():

    _w = (lambda a: (lambda t: t.to(torch.bfloat16) if t.is_floating_point() else t)(torch.as_tensor(a)))
    B, S, D = 4, 2048, 448
    return {
        "x": _w((lambda *s: torch.randn(*s, dtype=torch.bfloat16) * 0.05)(B, S, D)),
        "f": _w((lambda *s: torch.randn(*s, dtype=torch.bfloat16) * 0.05)(B, S, D)),
        "g": _w((lambda *s: torch.randn(*s, dtype=torch.bfloat16) * 0.05)(D) + 1.0),
        "b": _w((lambda *s: torch.randn(*s, dtype=torch.bfloat16) * 0.4)(D)),
        "alpha": _w(float(2.0)),
    }

def reference(x, f, g, b, alpha):
    return _layernorm(alpha * x + f, axis=-1) * g + b
```

```python
HEADER_COMMENTS = """; Kernarg layout for this problem (64 bytes, ptrs only, base s[0:1]):
"""
NAME = "standalone__deepnorm__prompt_kernel"

def wrap(body, grid, block, vgpr, sgpr, lds=0, accum=None, comments="", extra_kd=""):
    if accum is None:
        accum = (vgpr + 3) // 4 * 4
    s = HEADER_COMMENTS
    s += comments
    s += f"; @launch grid=({grid},1,1) block=({block},1,1) lds={lds}\n"
    s += '.amdgcn_target "amdgcn-amd-amdhsa--gfx950"\n.text\n'
    s += f".globl {NAME}\n.p2align 8\n.type {NAME},@function\n{NAME}:\n"
    s += body
    s += '.section .rodata,"a"\n.p2align 6\n'
    s += f".amdhsa_kernel {NAME}\n"
    s += f"  .amdhsa_next_free_vgpr {vgpr}\n  .amdhsa_next_free_sgpr {sgpr}\n  .amdhsa_accum_offset {accum}\n"
    s += "  .amdhsa_group_segment_fixed_size 0\n  .amdhsa_kernarg_size 64\n"
    s += "  .amdhsa_user_sgpr_count 2\n  .amdhsa_user_sgpr_kernarg_segment_ptr 1\n"
    s += "  .amdhsa_system_sgpr_workgroup_id_x 1\n"
    s += extra_kd
    s += ".end_amdhsa_kernel\n"
    return s
```

```python
import sys
from common import *
L=[]
def e(s): L.append("    "+s+"\n")
NB = 8192*896
e("s_load_dwordx8 s[4:11], s[0:1], 0")
e("s_load_dwordx4 s[12:15], s[0:1], 32")
e("v_lshrrev_b32 v1, 6, v0")
e("v_and_b32 v2, 63, v0")
e("s_lshl_b32 s3, s2, 2")
e("v_add_u32 v1, s3, v1")
e("v_mul_u32_u24 v1, 896, v1")
e("v_lshlrev_b32 v2, 4, v2")
e("v_add_u32 v1, v1, v2")
e("s_cmp_ge_u32 s2, 2048")
e("s_cbranch_scc1 L_end")
e("s_mov_b64 exec, 0x00ffffffffffffff") if False else None
e("s_mov_b32 exec_hi, 0x00ffffff")
e("s_waitcnt lgkmcnt(0)")
e("global_load_dwordx4 v[4:7], v1, s[4:5]")
e("global_load_dwordx4 v[8:11], v1, s[6:7]")
e("global_load_dwordx4 v[12:15], v2, s[8:9]")
e("global_load_dwordx4 v[16:19], v2, s[10:11]")
e("v_mov_b32 v3, 0")
e("global_load_ushort v3, v3, s[12:13]")
e("s_waitcnt vmcnt(0)")
e("v_lshlrev_b32 v3, 16, v3")
for i in range(4):
    e(f"v_lshlrev_b32 v{20+2*i}, 16, v{4+i}")
    e(f"v_and_b32 v{21+2*i}, 0xffff0000, v{4+i}")
    e(f"v_lshlrev_b32 v{28+2*i}, 16, v{8+i}")
    e(f"v_and_b32 v{29+2*i}, 0xffff0000, v{8+i}")
for i in range(8):
    e(f"v_fma_f32 v{20+i}, v{20+i}, v3, v{28+i}")
e("v_add_f32 v36, v20, v21")
for i in range(2,8):
    e(f"v_add_f32 v36, v36, v{20+i}")
def wave_reduce(v, sdst):
    e("s_mov_b64 exec, -1")
    e(f"v_cndmask_b32 v{v}, 0, v{v}, s[16:17]")
    e("s_nop 1")
    e(f"v_add_f32_dpp v{v}, v{v}, v{v} quad_perm:[1,0,3,2] row_mask:0xf bank_mask:0xf")
    e("s_nop 1")
    e(f"v_add_f32_dpp v{v}, v{v}, v{v} quad_perm:[2,3,0,1] row_mask:0xf bank_mask:0xf")
    e("s_nop 1")
    e(f"v_add_f32_dpp v{v}, v{v}, v{v} row_half_mirror row_mask:0xf bank_mask:0xf")
    e("s_nop 1")
    e(f"v_add_f32_dpp v{v}, v{v}, v{v} row_mirror row_mask:0xf bank_mask:0xf")
    e("s_nop 1")
    e(f"v_add_f32_dpp v{v}, v{v}, v{v} row_bcast:15 row_mask:0xa bank_mask:0xf")
    e("s_nop 1")
    e(f"v_add_f32_dpp v{v}, v{v}, v{v} row_bcast:31 row_mask:0xc bank_mask:0xf")
    e("s_nop 1")
    e(f"v_readlane_b32 s{sdst}, v{v}, 63")
    e("s_mov_b32 exec_hi, 0x00ffffff")
    e("s_nop 1")
e("s_mov_b32 s16, -1")
e("s_mov_b32 s17, 0x00ffffff")
wave_reduce(36, 18)
e("v_mov_b32 v37, 0x3b124925")
e("v_mul_f32 v37, s18, v37")
for i in range(8):
    e(f"v_sub_f32 v{20+i}, v{20+i}, v37")
e("v_mul_f32 v36, v20, v20")
for i in range(1,8):
    e(f"v_fmac_f32 v36, v{20+i}, v{20+i}")
wave_reduce(36, 18)
e("v_mov_b32 v37, 0x3b124925")
e("v_mov_b32 v38, 0x3727c5ac")
e("v_fma_f32 v37, s18, v37, v38")
e("v_rsq_f32 v37, v37")
e("s_nop 0")
for i in range(8):
    e(f"v_mul_f32 v{20+i}, v{20+i}, v37")
for i in range(4):
    e(f"v_lshlrev_b32 v{28+2*i}, 16, v{12+i}")
    e(f"v_and_b32 v{29+2*i}, 0xffff0000, v{12+i}")
    e(f"v_lshlrev_b32 v{40+2*i}, 16, v{16+i}")
    e(f"v_and_b32 v{41+2*i}, 0xffff0000, v{16+i}")
for i in range(8):
    e(f"v_fma_f32 v{20+i}, v{20+i}, v{28+i}, v{40+i}")
for i in range(4):
    e(f"v_cvt_pk_bf16_f32 v{4+i}, v{20+2*i}, v{21+2*i}")
e("global_store_dwordx4 v1, v[4:7], s[14:15]")
L.append("L_end:\n")
e("s_endpgm")
open(sys.argv[1],"w").write(wrap("".join(L), 2048, 256, 48, 24))
```

```python
import re
REG = re.compile(r"\b([vsa])(\d+)\b|\b([vsa])\[(\d+):(\d+)\]")
TRANS = ("v_rsq_f32", "v_rcp_f32", "v_sqrt_f32", "v_exp_f32", "v_log_f32")

def regs(txt):
    out = set()
    for m in REG.finditer(txt):
        if m.group(1):
            out.add(m.group(1) + m.group(2))
        else:
            for i in range(int(m.group(4)), int(m.group(5)) + 1):
                out.add(m.group(3) + str(i))
    return out

class Ins:
    def __init__(self, text):
        self.text = text
        code = text.split(";")[0].strip()
        self.op = code.split()[0] if code else ""
        rest = code[len(self.op):].strip()
        ops = [o.strip() for o in rest.split(",")] if rest else []
        self.ops = ops
        op = self.op
        self.label = code.endswith(":")
        self.mfma = op.startswith("v_mfma")
        self.valu = op.startswith("v_") and not self.mfma
        self.vmem = op.startswith(("global_", "buffer_"))
        self.store = self.vmem and "store" in op
        if op.startswith("buffer_wbl2"): ops = []
        self.dpp = "_dpp" in op
        self.permlane = op.startswith("v_permlane")
        self.readlane = op.startswith(("v_readlane", "v_readfirstlane"))
        self.trans = op.replace("_e32", "") in TRANS
        self.dot = op.startswith("v_dot")
        self.ds = op.startswith("ds_")
        self.w = set(); self.r = set(); self.mc = set(); self.mab = set()
        if self.label or not ops:
            pass
        elif self.store:
            self.r = regs(rest)
            data = ops[1] if op.startswith("global_") else ops[0]
            self.data = regs(data)
        elif self.mfma:
            self.w = regs(ops[0]); self.mab = regs(ops[1]) | regs(ops[2]); self.mc = regs(ops[3])
            self.r = self.mab | self.mc
            self.passes = 2 if "4x4x4" in op or "4x4x1" in op else (4 if "16x16x32" in op or "16x16x16" in op else 8)
        elif op.startswith(("s_cmp", "s_waitcnt", "s_cbranch", "s_branch", "s_nop", "s_setprio", "s_barrier", "s_endpgm", "s_setpc")):
            self.r = regs(rest)
        elif op.startswith("ds_write"):
            self.r = regs(rest)
        else:
            self.w = regs(ops[0]); self.r = regs(",".join(ops[1:]))
            if ops[0] == "vcc" : self.w = {"vcc"}
            if "vcc" in ops[1:]: self.r |= {"vcc"}
            if self.permlane: self.w |= regs(ops[1]); self.r |= regs(ops[0])
            if op.startswith(("v_fmac", "v_dot2c", "v_pk_fmac")) or self.dpp: self.r |= regs(ops[0])
        self.states = 1
        if op == "s_nop": self.states = int(ops[0]) + 1
        if op == "s_call_b64": self.states = 20
        if self.label or not op: self.states = 0

def need(p, c):
    n = 0
    vw = {x for x in p.w if x[0] in "va"}
    sw = {x for x in p.w if x[0] == "s" or x == "vcc"}
    if p.valu:
        if c.dpp and vw & c.r: n = max(n, 2)
        if c.permlane and vw & c.r: n = max(n, 2)
        if c.readlane and vw & c.r: n = max(n, 1)
        if p.trans and c.valu and not c.trans and vw & c.r: n = max(n, 1)
        if p.trans and c.mfma and vw & c.r: n = max(n, 2)
        if c.mfma and vw & c.r: n = max(n, 2)
        if sw & c.r:
            if c.valu or c.mfma: n = max(n, 4 if c.readlane else 2)
            elif c.vmem: n = max(n, 5)
            else: n = max(n, 4)
        if p.dot and (vw & (c.r | c.w)):
            same_c = c.dot and c.op == p.op and not (vw & regs(",".join(c.ops[1:3])))
            if not same_c: n = max(n, 3)
    if p.mfma:
        k = {2: 0, 4: 1, 8: 2}[p.passes]
        if c.mfma:
            if vw & c.mab: n = max(n, (5, 8, 12)[k])
            if vw & c.mc:
                n = max(n, (2, 0, 0)[k] if (vw == c.mc and p.passes == c.passes) else (4, 6, 10)[k])
            if vw & c.w and not (vw == c.mc):
                n = max(n, (4, 6, 10)[k])
        elif (c.valu or c.vmem or c.ds) and vw & (c.r | c.w):
            n = max(n, (5, 8, 12)[k])
        if c.valu and p.mc & c.w: n = max(n, (1, 3, 7)[k])
    if p.store and (c.valu or c.mfma) and len(p.data) >= 3 and p.data & c.w: n = max(n, 2)
    return n

class Asm:
    def __init__(self):
        self.ins = []
    def __call__(self, text):
        for line in text.split("\n"):
            if line.strip(): self.ins.append(Ins(line.strip()))
    def finish(self):
        out = []
        for c in self.ins:
            gap = 0; req = 0
            for p in reversed(out):
                if gap >= 20: break
                r = need(p, c) - gap
                req = max(req, r)
                gap += p.states
            if req > 0:
                out.append(Ins(f"s_nop {req-1}"))
            out.append(c)
        self.out = out
        return "".join((i.text + "\n") if i.label else ("    " + i.text + "\n") for i in out)
    def high(self, kind):
        m = -1
        for i in self.ins:
            for x in i.w | i.r:
                if x[0] == kind and x != "vcc": m = max(m, int(x[1:]))
        return m + 1
```

```python
import sys
from common import *
from asmlib import Asm, Ins
MF = "v_mfma_f32_4x4x4_16b_bf16"
INV_N = "0x3b124925"
NINV_N = "0xbb124925"
EPS = "0x3727c5ac"

def gen(R=1, block=256, mode="fp32", lf="", sf="", touch="", gbmfma=False, stamps=False, xcd=False, hops=0,
        alpha_const=False, gb_last=False, comments="", split=None):
    wpb = block // 64
    rows_wg = R * wpb
    grid = 8192 // rows_wg
    a = Asm()
    p = lambda r: f"v[{r}:{r+1}]"
    q = lambda r: f"v[{r}:{r+3}]"
    sp = lambda r: f"s[{r}:{r+1}]"
    COL, OFF, SH, K = 0, 1, 2, 3
    AI, AA = 4, 6
    T0 = 8
    S1 = 12; S2 = S1 + R
    GB = (S2 + R + 3) // 4 * 4; BB = GB + 8
    XR = BB + 8; FR = XR + 4 * R; HB = FR + 4 * R
    MD = HB + 8 * R
    SM = 36
    bias = 3584 if R > 4 else 0
    ro = lambda r: r * 896 - bias
    rh = mode in ("h", "exact"); exact = mode == "exact"
    if stamps: a("s_memrealtime s[24:25]\ns_load_dwordx2 s[32:33], s[0:1], 56")
    a("s_load_dwordx8 s[4:11], s[0:1], 0        ; x f g b")
    a("s_load_dwordx4 s[12:15], s[0:1], 32")
    a(f"s_cmp_ge_u32 s2, {grid}")
    a("s_cbranch_scc1 L_end")
    if xcd:
        a("s_and_b32 s20, s2, 7")
        a("s_lshr_b32 s21, s2, 3")
        a(f"s_mul_i32 s20, s20, {grid//8}")
        a("s_add_u32 s20, s20, s21")
        a(f"s_mul_i32 s3, s20, {rows_wg*896}")
    else:
        a(f"s_mul_i32 s3, s2, {rows_wg*896}")
    if stamps: a("v_mov_b32 v127, v0")
    a(f"v_lshrrev_b32 v{OFF}, 6, v0")
    if hops: a(f"v_readfirstlane_b32 s34, v{OFF}")
    a(f"v_and_b32 v{COL}, 63, v0")
    a(f"v_mul_u32_u24 v{OFF}, {896*R}, v{OFF}")
    a(f"v_lshlrev_b32 v{COL}, 4, v{COL}")
    a(f"v_add3_u32 v{OFF}, v{OFF}, v{COL}, s3")
    if bias: a(f"v_add_u32 v{OFF}, {bias}, v{OFF}")
    if touch == "w": a(f"v_sub_u32 v{SH}, v{OFF}, v{COL}")
    if R > 1:
        for r in range(0, 2 * R, 2): a(f"v_mov_b64 {p(S1 + r)}, 0")
    if R == 8: a(f"v_mov_b32 v{K}, {INV_N}")
    a("s_mov_b32 exec_hi, 0x00ffffff")
    a("s_waitcnt lgkmcnt(0)")
    if stamps: a("s_memrealtime s[26:27]")
    def ldgb():
        a(f"global_load_dwordx4 {q(HB)}, v{COL}, s[8:9]")
        a(f"global_load_dwordx4 {q(HB+4)}, v{COL}, s[10:11]")
    if touch == "w":
        a(f"global_store_dword v{SH}, v{SH}, s[14:15] offset:{ro(0)}")
    if not gb_last: ldgb()
    for r in range(R):
        a(f"global_load_dwordx4 {q(XR+4*r)}, v{OFF}, s[4:5] offset:{ro(r)} {lf}")
        a(f"global_load_dwordx4 {q(FR+4*r)}, v{OFF}, s[6:7] offset:{ro(r)} {lf}")
    if gb_last:
        a(f"global_load_dwordx4 {q(GB+4)}, v{COL}, s[8:9]")
        a(f"global_load_dwordx4 {q(BB+4)}, v{COL}, s[10:11]")
    if not alpha_const: a("s_load_dword s16, s[12:13], 0")
    if touch == "s": a("s_load_dword s23, s[14:15], s3")
    a(f"v_and_b32 v{SH}, 48, v{COL}")
    a("s_mov_b32 s20, 0x3f80")
    a("s_mov_b32 s21, 0")
    a("s_mov_b32 s17, 0")
    a(f"v_lshlrev_b64 {p(AI)}, v{SH}, s[20:21]")
    if R != 8: a(f"v_mov_b32 v{K}, {INV_N}")
    if not gbmfma: a("s_mov_b32 s22, 0xffff0000")
    if hops:
        for hp in range(hops):
            a(f"s_cmp_eq_u32 s34, {hp}")
            a(f"s_cbranch_scc1 L_hop{hp}")
        a("L_hopped:")
        a("s_cmp_eq_u32 s17, 1")
    body_start = len(a.ins)
    def unpack_gb(srcg, srcb):
        for src, dst in ((srcg, GB), (srcb, BB)):
            if gbmfma and not gb_last:
                a(f"{MF} {q(dst)}, {p(AI)}, {p(src)}, 0")
                a(f"{MF} {q(dst+4)}, {p(AI)}, {p(src+2)}, 0")
            else:
                for j in range(4):
                    a(f"v_lshlrev_b32 v{dst+2*j}, 16, v{src+j}")
                    a(f"v_and_b32 v{dst+2*j+1}, s22, v{src+j}")
    if not gb_last:
        a(f"s_waitcnt vmcnt({2*R})")
        unpack_gb(HB, HB + 4)
    if alpha_const:
        a("s_mov_b32 s16, 0x4000")
    else:
        a("s_waitcnt lgkmcnt(0)")
        a("s_pack_ll_b32_b16 s16, s16, 0")
    a(f"v_lshlrev_b64 {p(AA)}, v{SH}, s[16:17]")
    def rnd(r, c0="0", c1="0"):
        h = HB + 8*r
        for j in range(4): a(f"v_cvt_pk_bf16_f32 v{XR+4*r+j}, v{h+2*j}, v{h+2*j+1}")
        return [f"{MF} {q(h)}, {p(AI)}, {p(XR+4*r)}, {c0}", f"{MF} {q(h+4)}, {p(AI)}, {p(XR+4*r+2)}, {c1}"]
    D = "row_mask:0xf bank_mask:0xf"
    def reduce(base):
        regs_ = [base + r for r in range(R)]
        if R == 1:
            v = base
            a(f"v_add_f32_dpp v{v}, v{v}, v{v} quad_perm:[1,0,3,2] {D}")
            a(f"v_add_f32_dpp v{v}, v{v}, v{v} quad_perm:[2,3,0,1] {D}")
            a(f"v_add_f32_dpp v{v}, v{v}, v{v} row_half_mirror {D}")
            a(f"v_add_f32_dpp v{v}, v{v}, v{v} row_mirror {D} bound_ctrl:1")
            a(f"v_add_f32_dpp v{v}, v{v}, v{v} row_bcast:15 row_mask:0xa bank_mask:0xf")
            a(f"v_add_f32_dpp v{v}, v{v}, v{v} row_bcast:31 row_mask:0xc bank_mask:0xf")
            return v, [48]
        a("s_mov_b32 exec_hi, -1")
        lanes = [0] * R
        nxt = []
        for i in range(0, R, 2):
            a(f"v_permlane32_swap_b32 v{regs_[i]}, v{regs_[i+1]}")
        for i in range(0, R, 2):
            a(f"v_add_f32 v{regs_[i]}, v{regs_[i]}, v{regs_[i+1]}")
            nxt.append(regs_[i]); lanes[i+1] += 32
        regs_ = nxt
        if R >= 4:
            nxt = []
            for i in range(0, len(regs_), 2):
                a(f"v_permlane16_swap_b32 v{regs_[i]}, v{regs_[i+1]}")
            for i in range(0, len(regs_), 2):
                a(f"v_add_f32 v{regs_[i]}, v{regs_[i]}, v{regs_[i+1]}")
                nxt.append(regs_[i])
            for r in range(R):
                if (r >> 1) & 1: lanes[r] += 16
            regs_ = nxt
        v = regs_[0]
        if R == 8:
            a(f"v_add_f32_dpp v{v}, v{v}, v{v} row_ror:8 row_mask:0xf bank_mask:0x3")
            a(f"v_add_f32_dpp v{v}, v{regs_[1]}, v{regs_[1]} row_ror:8 row_mask:0xf bank_mask:0xc")
            for r in range(4, 8): lanes[r] += 8
        a(f"v_add_f32_dpp v{v}, v{v}, v{v} quad_perm:[1,0,3,2] {D}")
        a(f"v_add_f32_dpp v{v}, v{v}, v{v} quad_perm:[2,3,0,1] {D}")
        a(f"v_add_f32_dpp v{v}, v{v}, v{v} row_half_mirror {D}")
        if R < 8: a(f"v_add_f32_dpp v{v}, v{v}, v{v} row_mirror {D}")
        if R == 2:
            a(f"v_add_f32_dpp v{v}, v{v}, v{v} row_bcast:15 row_mask:0xa bank_mask:0xf")
            lanes = [16, 48]
        return v, lanes
    def bcast(v, lanes):
        for r in range(R): a(f"v_readlane_b32 s{SM+2*r}, v{v}, {lanes[r]}")
        if R > 1: a("s_mov_b32 exec_hi, 0x00ffffff")
    nld = 2 if gb_last else 0
    for r in range(R):
        a(f"s_waitcnt vmcnt({2*(R-1-r) + nld})")
        if stamps and r == R - 1: a("s_memrealtime s[28:29]")
        h = HB + 8*r
        a(f"{MF} {q(h)}, {p(AA)}, {p(XR+4*r)}, 0")
        a(f"{MF} {q(h+4)}, {p(AA)}, {p(XR+4*r+2)}, 0")
        a(f"{MF} {q(h)}, {p(AI)}, {p(FR+4*r)}, {q(h)}")
        a(f"{MF} {q(h+4)}, {p(AI)}, {p(FR+4*r+2)}, {q(h+4)}")
        if rh:
            for m_ in rnd(r): a(m_)
        a(f"v_pk_add_f32 {p(T0)}, {p(h)}, {p(h+2)}")
        a(f"v_pk_add_f32 {p(T0+2)}, {p(h+4)}, {p(h+6)}")
        a(f"v_pk_add_f32 {p(T0)}, {p(T0)}, {p(T0+2)}")
        a(f"v_add_f32 v{S1+r}, v{T0}, v{T0+1}")
    v, lanes = reduce(S1)
    a(f"v_mul_f32 v{v}, {NINV_N}, v{v}           ; -mean")
    if rh:
        a(f"v_cvt_pk_bf16_f32 v{T0}, v{v}, v{v}")
        a(f"v_lshlrev_b32 v{T0}, 16, v{T0}")
        bcast(T0, lanes)
        if R > 1: a.ins.pop()
        a(f"v_sub_f32 v{MD}, v{v}, v{T0}")
        a(f"v_mul_f32 v{MD}, v{MD}, v{MD}")
        if R > 1: a("s_mov_b32 exec_hi, 0x00ffffff")
    else:
        bcast(v, lanes)
    bc = "op_sel_hi:[1,0]"
    for r in range(R):
        h = HB + 8*r
        for j in range(4): a(f"v_pk_add_f32 {p(h+2*j)}, {p(h+2*j)}, {sp(SM+2*r)} {bc}")
        a(f"v_pk_mul_f32 {p(T0)}, {p(h)}, {p(h)}")
        for j in range(1, 4): a(f"v_pk_fma_f32 {p(T0)}, {p(h+2*j)}, {p(h+2*j)}, {p(T0)}")
        a(f"v_add_f32 v{S2+r}, v{T0}, v{T0+1}")
    if exact:
        ms = []
        for r in range(R): ms += rnd(r)
        for m_ in ms: a(m_)
    if gb_last:
        a("s_waitcnt vmcnt(0)")
        unpack_gb(GB + 4, BB + 4)
    v, lanes = reduce(S2)
    if rh:
        a(f"v_fma_f32 v{v}, v{v}, v{K}, -v{MD}")
        a(f"v_cvt_pk_bf16_f32 v{v}, v{v}, v{v}")
        a(f"v_lshlrev_b32 v{v}, 16, v{v}")
        a(f"v_add_f32 v{v}, {EPS}, v{v}")
        a(f"v_cvt_pk_bf16_f32 v{v}, v{v}, v{v}")
        a(f"v_lshlrev_b32 v{v}, 16, v{v}")
        a(f"v_sqrt_f32 v{v}, v{v}")
        a(f"v_cvt_pk_bf16_f32 v{v}, v{v}, v{v}")
        a(f"v_lshlrev_b32 v{v}, 16, v{v}")
        a(f"v_rcp_f32 v{v}, v{v}")
    else:
        a(f"v_fmaak_f32 v{v}, v{v}, v{K}, {EPS}")
        a(f"v_rsq_f32 v{v}, v{v}")
    bcast(v, lanes)
    def store(r):
        if split is not None and R == 1:
            thr, sf2 = split
            a(f"s_cmp_ge_u32 s2, {int(grid * thr)}")
            a("s_cbranch_scc1 L_st2")
            a(f"global_store_dwordx4 v{OFF}, {q(FR+4*r)}, s[14:15] offset:{ro(r)} {sf}")
            if stamps: a("s_branch L_st3")
            else: a("s_endpgm")
            a("L_st2:")
            a(f"global_store_dwordx4 v{OFF}, {q(FR+4*r)}, s[14:15] offset:{ro(r)} {sf2}")
            a("L_st3:")
            return
        a(f"global_store_dwordx4 v{OFF}, {q(FR+4*r)}, s[14:15] offset:{ro(r)} {sf}")
    if exact:
        ms = []
        for r in range(R):
            h = HB + 8*r
            for j in range(4): a(f"v_pk_mul_f32 {p(h+2*j)}, {p(h+2*j)}, {sp(SM+2*r)} {bc}")
            ms += rnd(r)
        for m_ in ms: a(m_)
        ms = []
        for r in range(R):
            h = HB + 8*r
            for j in range(4): a(f"v_pk_mul_f32 {p(h+2*j)}, {p(h+2*j)}, {p(GB+2*j)}")
            ms += rnd(r, q(BB), q(BB+4))
        for m_ in ms: a(m_)
        for r in range(R):
            h = HB + 8*r
            for j in range(4): a(f"v_cvt_pk_bf16_f32 v{FR+4*r+j}, v{h+2*j}, v{h+2*j+1}")
            store(r)
    else:
        for r in range(R):
            h = HB + 8*r
            for j in range(4): a(f"v_pk_mul_f32 {p(h+2*j)}, {p(h+2*j)}, {sp(SM+2*r)} {bc}")
            for j in range(4): a(f"v_pk_fma_f32 {p(h+2*j)}, {p(h+2*j)}, {p(GB+2*j)}, {p(BB+2*j)}")
            for j in range(4): a(f"v_cvt_pk_bf16_f32 v{FR+4*r+j}, v{h+2*j}, v{h+2*j+1}")
            store(r)
    body_end = len(a.ins)
    if hops:
        n = body_end - body_start
        for i_ in a.ins[body_start:body_end]:
            assert not i_.op.startswith("s_") or i_.op in ("s_waitcnt", "s_mov_b32", "s_mov_b64", "s_nop", "s_pack_ll_b32_b16", "s_memrealtime"), i_.text
        for hp in reversed(range(hops)):
            at = body_start + (n * (hp + 1)) // hops - (1 if hp == hops - 1 else 0)
            a.ins[at:at] = [Ins(f"L_hop{hp}:"), Ins("s_cbranch_scc1 L_hopped")]
    if stamps:
        a("s_waitcnt vmcnt(0)\ns_memrealtime s[30:31]\ns_waitcnt lgkmcnt(0)")
        a("s_mov_b64 exec, -1")
        a("v_lshrrev_b32 v1, 6, v127")
        a(f"s_mul_i32 s3, s2, {block//64}")
        a("v_add_u32 v1, s3, v1\nv_lshlrev_b32 v1, 5, v1")
        for i in range(8): a(f"v_mov_b32 v{8+i}, s{24+i}")
        a("s_mov_b64 exec, 1")
        a("global_store_dwordx4 v1, v[8:11], s[32:33]\nglobal_store_dwordx4 v1, v[12:15], s[32:33] offset:16")
    nv = None
    a("L_end:")
    a("s_endpgm")
    body = a.finish()
    nv = a.high("v")
    if stamps:
        top = max(MD + 1, 16)
        body = body.replace("v127", f"v{top}"); nv = top + 1
    return wrap(body, grid, block, nv, max(a.high("s"), 24), comments=comments)

if __name__ == "__main__":
    for R in (1, 2, 4, 8):
        for mode in ("fp32", "h", "exact"):
            for st in (False, True):
                open(f"../var/A{R}_{mode}{'_st' if st else ''}.s", "w").write(gen(R=R, mode=mode, stamps=st))
```

```python
import sys, re
from gen_a import gen
def build(name):
    d = dict(R="1", t="n", l="p", s="p", x="0", g="0", a="0", h="0", b="256", m="f", o="0", z="0")
    for tok in name.split("_"):
        d[tok[0]] = tok[1:]
    fl = {"p": "", "n": "nt", "c": "sc1", "d": "sc0 sc1", "e": "sc1 nt", "f": "sc0 sc1 nt", "g": "sc0", "h": "sc0 nt"}
    split = (int(d["y"][1:]) / 8, fl[d["y"][0]]) if "y" in d else None
    return gen(R=int(d["R"]), touch={"n": ""}.get(d["t"], d["t"]), lf=fl[d["l"]], sf=fl[d["s"]], xcd=d["x"] == "1",
               gbmfma=d["g"] == "1", alpha_const=d["a"] == "1", hops=int(d["h"]), block=int(d["b"]),
               mode={"f": "fp32", "h": "h", "e": "exact"}[d["m"]], gb_last=d["o"] == "1", stamps=d["z"] == "1", split=split, barrier=d.get('w') == '1', fence=int(d.get('f', '0')))
if __name__ == "__main__":
    for n in sys.argv[1:]:
        open(f"../var/{n}.s", "w").write(build(n))
```

```python
import sys
from common import *
from asmlib import Asm, Ins
MF = "v_mfma_f32_4x4x4_16b_bf16"
INV_N = "0x3b124925"
NINV_N = "0xbb124925"
EPS = "0x3727c5ac"

def gen(R=1, block=256, mode="fp32", lf="", sf="", touch="", gbmfma=False, stamps=False, xcd=False, hops=0,
        alpha_const=False, gb_last=False, comments="", split=None, barrier=False, fence=0):
    wpb = block // 64
    rows_wg = R * wpb
    grid = 8192 // rows_wg
    a = Asm()
    p = lambda r: f"v[{r}:{r+1}]"
    q = lambda r: f"v[{r}:{r+3}]"
    sp = lambda r: f"s[{r}:{r+1}]"
    COL, OFF, SH, K = 0, 1, 2, 3
    AI, AA = 4, 6
    T0 = 8
    S1 = 12; S2 = S1 + R
    GB = (S2 + R + 3) // 4 * 4; BB = GB + 8
    XR = BB + 8; FR = XR + 4 * R; HB = FR + 4 * R
    MD = HB + 8 * R
    GR = (MD + 1 + 3) // 4 * 4 if (mode != "fp32") else MD
    FN = GR + (8 if gb_last else 0)
    SM = 36
    bias = 3584 if R > 4 else 0
    ro = lambda r: r * 896 - bias
    rh = mode in ("h", "exact"); exact = mode == "exact"
    if stamps: a("s_memrealtime s[24:25]\ns_load_dwordx2 s[32:33], s[0:1], 56")
    a("s_load_dwordx8 s[4:11], s[0:1], 0        ; x f g b")
    a("s_load_dwordx4 s[12:15], s[0:1], 32")
    a(f"s_cmp_ge_u32 s2, {grid}")
    a("s_cbranch_scc1 L_end")
    if xcd:
        a("s_and_b32 s20, s2, 7")
        a("s_lshr_b32 s21, s2, 3")
        a(f"s_mul_i32 s20, s20, {grid//8}")
        a("s_add_u32 s20, s20, s21")
        a(f"s_mul_i32 s3, s20, {rows_wg*896}")
    else:
        a(f"s_mul_i32 s3, s2, {rows_wg*896}")
    if stamps: a("v_mov_b32 v127, v0")
    a(f"v_lshrrev_b32 v{OFF}, 6, v0")
    if hops: a(f"v_readfirstlane_b32 s34, v{OFF}")
    a(f"v_and_b32 v{COL}, 63, v0")
    a(f"v_mul_u32_u24 v{OFF}, {896*R}, v{OFF}")
    a(f"v_lshlrev_b32 v{COL}, 4, v{COL}")
    a(f"v_add3_u32 v{OFF}, v{OFF}, v{COL}, s3")
    if bias: a(f"v_add_u32 v{OFF}, {bias}, v{OFF}")
    if touch == "w": a(f"v_sub_u32 v{SH}, v{OFF}, v{COL}")
    if R > 1:
        for r in range(0, 2 * R, 2): a(f"v_mov_b64 {p(S1 + r)}, 0")
    if R == 8: a(f"v_mov_b32 v{K}, {INV_N}")
    a("s_mov_b32 exec_hi, 0x00ffffff")
    a("s_waitcnt lgkmcnt(0)")
    if stamps: a("s_memrealtime s[26:27]")
    def ldgb():
        a(f"global_load_dwordx4 {q(HB)}, v{COL}, s[8:9]")
        a(f"global_load_dwordx4 {q(HB+4)}, v{COL}, s[10:11]")
    if touch == "w":
        a(f"global_store_dword v{SH}, v{SH}, s[14:15] offset:{ro(0)}")
    if not gb_last: ldgb()
    for r in range(R):
        a(f"global_load_dwordx4 {q(XR+4*r)}, v{OFF}, s[4:5] offset:{ro(r)} {lf}")
        a(f"global_load_dwordx4 {q(FR+4*r)}, v{OFF}, s[6:7] offset:{ro(r)} {lf}")
    if gb_last:
        a(f"global_load_dwordx4 {q(GR)}, v{COL}, s[8:9]")
        a(f"global_load_dwordx4 {q(GR+4)}, v{COL}, s[10:11]")
    if not alpha_const: a("s_load_dword s16, s[12:13], 0")
    if touch == "s": a("s_load_dword s23, s[14:15], s3")
    a(f"v_and_b32 v{SH}, 48, v{COL}")
    a("s_mov_b32 s20, 0x3f80")
    a("s_mov_b32 s21, 0")
    a("s_mov_b32 s17, 0")
    a(f"v_lshlrev_b64 {p(AI)}, v{SH}, s[20:21]")
    if R != 8: a(f"v_mov_b32 v{K}, {INV_N}")
    if not gbmfma: a("s_mov_b32 s22, 0xffff0000")
    if hops:
        for hp in range(hops):
            a(f"s_cmp_eq_u32 s34, {hp}")
            a(f"s_cbranch_scc1 L_hop{hp}")
        a("L_hopped:")
        a("s_cmp_eq_u32 s17, 1")
    body_start = len(a.ins)
    def unpack_gb(srcg, srcb):
        for src, dst in ((srcg, GB), (srcb, BB)):
            if gbmfma:
                a(f"{MF} {q(dst)}, {p(AI)}, {p(src)}, 0")
                a(f"{MF} {q(dst+4)}, {p(AI)}, {p(src+2)}, 0")
            else:
                for j in range(4):
                    a(f"v_lshlrev_b32 v{dst+2*j}, 16, v{src+j}")
                    a(f"v_and_b32 v{dst+2*j+1}, s22, v{src+j}")
    if not gb_last:
        a(f"s_waitcnt vmcnt({2*R})")
        unpack_gb(HB, HB + 4)
    if alpha_const:
        a("s_mov_b32 s16, 0x4000")
    else:
        a("s_waitcnt lgkmcnt(0)")
        a("s_pack_ll_b32_b16 s16, s16, 0")
    a(f"v_lshlrev_b64 {p(AA)}, v{SH}, s[16:17]")
    def rnd(r, c0="0", c1="0"):
        h = HB + 8*r
        for j in range(4): a(f"v_cvt_pk_bf16_f32 v{XR+4*r+j}, v{h+2*j}, v{h+2*j+1}")
        return [f"{MF} {q(h)}, {p(AI)}, {p(XR+4*r)}, {c0}", f"{MF} {q(h+4)}, {p(AI)}, {p(XR+4*r+2)}, {c1}"]
    D = "row_mask:0xf bank_mask:0xf"
    fill = []
    a0_ = a
    def a_(t):
        if "_dpp" in t:
            for _ in range(2):
                if fill: a0_.ins.append(fill.pop(0))
        a0_(t)
    def reduce(base):
        regs_ = [base + r for r in range(R)]
        if R == 1:
            v = base
            a_(f"v_add_f32_dpp v{v}, v{v}, v{v} quad_perm:[1,0,3,2] {D}")
            a_(f"v_add_f32_dpp v{v}, v{v}, v{v} quad_perm:[2,3,0,1] {D}")
            a_(f"v_add_f32_dpp v{v}, v{v}, v{v} row_half_mirror {D}")
            a_(f"v_add_f32_dpp v{v}, v{v}, v{v} row_mirror {D} bound_ctrl:1")
            a_(f"v_add_f32_dpp v{v}, v{v}, v{v} row_bcast:15 row_mask:0xa bank_mask:0xf")
            a_(f"v_add_f32_dpp v{v}, v{v}, v{v} row_bcast:31 row_mask:0xc bank_mask:0xf")
            return v, [48]
        a("s_mov_b32 exec_hi, -1")
        lanes = [0] * R
        nxt = []
        for i in range(0, R, 2):
            a(f"v_permlane32_swap_b32 v{regs_[i]}, v{regs_[i+1]}")
        for i in range(0, R, 2):
            a(f"v_add_f32 v{regs_[i]}, v{regs_[i]}, v{regs_[i+1]}")
            nxt.append(regs_[i]); lanes[i+1] += 32
        regs_ = nxt
        if R >= 4:
            nxt = []
            for i in range(0, len(regs_), 2):
                a(f"v_permlane16_swap_b32 v{regs_[i]}, v{regs_[i+1]}")
            for i in range(0, len(regs_), 2):
                a(f"v_add_f32 v{regs_[i]}, v{regs_[i]}, v{regs_[i+1]}")
                nxt.append(regs_[i])
            for r in range(R):
                if (r >> 1) & 1: lanes[r] += 16
            regs_ = nxt
        v = regs_[0]
        if R == 8:
            a_(f"v_add_f32_dpp v{v}, v{v}, v{v} row_ror:8 row_mask:0xf bank_mask:0x3")
            a_(f"v_add_f32_dpp v{v}, v{regs_[1]}, v{regs_[1]} row_ror:8 row_mask:0xf bank_mask:0xc")
            for r in range(4, 8): lanes[r] += 8
        a_(f"v_add_f32_dpp v{v}, v{v}, v{v} quad_perm:[1,0,3,2] {D}")
        a_(f"v_add_f32_dpp v{v}, v{v}, v{v} quad_perm:[2,3,0,1] {D}")
        a_(f"v_add_f32_dpp v{v}, v{v}, v{v} row_half_mirror {D}")
        if R < 8: a_(f"v_add_f32_dpp v{v}, v{v}, v{v} row_mirror {D}")
        if R == 2:
            a_(f"v_add_f32_dpp v{v}, v{v}, v{v} row_bcast:15 row_mask:0xa bank_mask:0xf")
            lanes = [16, 48]
        return v, lanes
    def bcast(v, lanes):
        for r in range(R): a(f"v_readlane_b32 s{SM+2*r}, v{v}, {lanes[r]}")
        if R > 1: a("s_mov_b32 exec_hi, 0x00ffffff")
    nld = 2 if gb_last else 0
    for r in range(R):
        a(f"s_waitcnt vmcnt({2*(R-1-r) + nld})")
        if stamps and r == R - 1: a("s_memrealtime s[28:29]")
        if fence == 1 and r == R - 1:
            a(f"global_load_dword v{FN}, v{COL}, s[8:9]")
        h = HB + 8*r
        a(f"{MF} {q(h)}, {p(AA)}, {p(XR+4*r)}, 0")
        a(f"{MF} {q(h+4)}, {p(AA)}, {p(XR+4*r+2)}, 0")
        a(f"{MF} {q(h)}, {p(AI)}, {p(FR+4*r)}, {q(h)}")
        a(f"{MF} {q(h+4)}, {p(AI)}, {p(FR+4*r+2)}, {q(h+4)}")
        if rh:
            for m_ in rnd(r): a(m_)
        a(f"v_pk_add_f32 {p(T0)}, {p(h)}, {p(h+2)}")
        a(f"v_pk_add_f32 {p(T0+2)}, {p(h+4)}, {p(h+6)}")
        a(f"v_pk_add_f32 {p(T0)}, {p(T0)}, {p(T0+2)}")
        a(f"v_add_f32 v{S1+r}, v{T0}, v{T0+1}")
    if gb_last:
        a("s_waitcnt vmcnt(0)")
        n0 = len(a.ins); unpack_gb(GR, GR + 4); fill.extend(a.ins[n0:]); del a.ins[n0:]
    v, lanes = reduce(S1)
    a(f"v_mul_f32 v{v}, {NINV_N}, v{v}           ; -mean")
    if rh:
        a(f"v_cvt_pk_bf16_f32 v{T0}, v{v}, v{v}")
        a(f"v_lshlrev_b32 v{T0}, 16, v{T0}")
        bcast(T0, lanes)
        if R > 1: a.ins.pop()
        a(f"v_sub_f32 v{MD}, v{v}, v{T0}")
        a(f"v_mul_f32 v{MD}, v{MD}, v{MD}")
        if R > 1: a("s_mov_b32 exec_hi, 0x00ffffff")
    else:
        bcast(v, lanes)
    bc = "op_sel_hi:[1,0]"
    for r in range(R):
        h = HB + 8*r
        for j in range(4): a(f"v_pk_add_f32 {p(h+2*j)}, {p(h+2*j)}, {sp(SM+2*r)} {bc}")
        a(f"v_pk_mul_f32 {p(T0)}, {p(h)}, {p(h)}")
        for j in range(1, 4): a(f"v_pk_fma_f32 {p(T0)}, {p(h+2*j)}, {p(h+2*j)}, {p(T0)}")
        a(f"v_add_f32 v{S2+r}, v{T0}, v{T0+1}")
    if exact:
        ms = []
        for r in range(R): ms += rnd(r)
        for m_ in ms: a(m_)
    v, lanes = reduce(S2)
    if rh:
        a(f"v_fma_f32 v{v}, v{v}, v{K}, -v{MD}")
        a(f"v_cvt_pk_bf16_f32 v{v}, v{v}, v{v}")
        a(f"v_lshlrev_b32 v{v}, 16, v{v}")
        a(f"v_add_f32 v{v}, {EPS}, v{v}")
        a(f"v_cvt_pk_bf16_f32 v{v}, v{v}, v{v}")
        a(f"v_lshlrev_b32 v{v}, 16, v{v}")
        a(f"v_sqrt_f32 v{v}, v{v}")
        a(f"v_cvt_pk_bf16_f32 v{v}, v{v}, v{v}")
        a(f"v_lshlrev_b32 v{v}, 16, v{v}")
        a(f"v_rcp_f32 v{v}, v{v}")
    else:
        a(f"v_fmaak_f32 v{v}, v{v}, v{K}, {EPS}")
        a(f"v_rsq_f32 v{v}, v{v}")
    bcast(v, lanes)
    a.ins.extend(fill); fill.clear()
    def store(r):
        if split is not None and R == 1:
            thr, sf2 = split
            a(f"s_cmp_ge_u32 s2, {int(grid * thr)}")
            a("s_cbranch_scc1 L_st2")
            a(f"global_store_dwordx4 v{OFF}, {q(FR+4*r)}, s[14:15] offset:{ro(r)} {sf}")
            if stamps: a("s_branch L_st3")
            else: a("s_endpgm")
            a("L_st2:")
            a(f"global_store_dwordx4 v{OFF}, {q(FR+4*r)}, s[14:15] offset:{ro(r)} {sf2}")
            a("L_st3:")
            return
        a(f"global_store_dwordx4 v{OFF}, {q(FR+4*r)}, s[14:15] offset:{ro(r)} {sf}")
    if exact:
        ms = []
        for r in range(R):
            h = HB + 8*r
            for j in range(4): a(f"v_pk_mul_f32 {p(h+2*j)}, {p(h+2*j)}, {sp(SM+2*r)} {bc}")
            ms += rnd(r)
        for m_ in ms: a(m_)
        ms = []
        for r in range(R):
            h = HB + 8*r
            for j in range(4): a(f"v_pk_mul_f32 {p(h+2*j)}, {p(h+2*j)}, {p(GB+2*j)}")
            ms += rnd(r, q(BB), q(BB+4))
        for m_ in ms: a(m_)
        for r in range(R):
            h = HB + 8*r
            for j in range(4): a(f"v_cvt_pk_bf16_f32 v{FR+4*r+j}, v{h+2*j}, v{h+2*j+1}")
            store(r)
    else:
        for r in range(R):
            h = HB + 8*r
            for j in range(4): a(f"v_pk_mul_f32 {p(h+2*j)}, {p(h+2*j)}, {sp(SM+2*r)} {bc}")
            for j in range(4): a(f"v_pk_fma_f32 {p(h+2*j)}, {p(h+2*j)}, {p(GB+2*j)}, {p(BB+2*j)}")
            for j in range(4): a(f"v_cvt_pk_bf16_f32 v{FR+4*r+j}, v{h+2*j}, v{h+2*j+1}")
            if fence and r == 0:
                if fence == 2: a(f"global_load_dword v{FN}, v{COL}, s[8:9]")
                a("s_waitcnt vmcnt(0)")
            if not barrier: store(r)
        if barrier:
            a("s_barrier")
            for r in range(R): store(r)
    body_end = len(a.ins)
    if hops:
        n = body_end - body_start
        for i_ in a.ins[body_start:body_end]:
            assert not i_.op.startswith("s_") or i_.op in ("s_waitcnt", "s_mov_b32", "s_mov_b64", "s_nop", "s_pack_ll_b32_b16", "s_memrealtime"), i_.text
        for hp in reversed(range(hops)):
            at = body_start + (n * (hp + 1)) // hops - (1 if hp == hops - 1 else 0)
            a.ins[at:at] = [Ins(f"L_hop{hp}:"), Ins("s_cbranch_scc1 L_hopped")]
    if stamps:
        a("s_waitcnt vmcnt(0)\ns_memrealtime s[30:31]\ns_waitcnt lgkmcnt(0)")
        a("s_mov_b64 exec, -1")
        a("v_lshrrev_b32 v1, 6, v127")
        a(f"s_mul_i32 s3, s2, {block//64}")
        a("v_add_u32 v1, s3, v1\nv_lshlrev_b32 v1, 5, v1")
        for i in range(8): a(f"v_mov_b32 v{8+i}, s{24+i}")
        a("s_mov_b64 exec, 1")
        a("global_store_dwordx4 v1, v[8:11], s[32:33]\nglobal_store_dwordx4 v1, v[12:15], s[32:33] offset:16")
    nv = None
    a("L_end:")
    a("s_endpgm")
    body = a.finish()
    nv = a.high("v")
    if stamps:
        top = max(GR + 9, 16)
        body = body.replace("v127", f"v{top}"); nv = top + 1
    return wrap(body, grid, block, nv, max(a.high("s"), 24), comments=comments)

if __name__ == "__main__":
    for R in (1, 2, 4, 8):
        for mode in ("fp32", "h", "exact"):
            for st in (False, True):
                open(f"../var/A{R}_{mode}{'_st' if st else ''}.s", "w").write(gen(R=R, mode=mode, stamps=st))
```

```python
HEADER_COMMENTS = """; Kernarg layout for this problem (64 bytes, ptrs only, base s[0:1]):
"""
NAME = "standalone__deepnorm__prompt_kernel"

def wrap(body, grid, block, vgpr, sgpr, lds=0, accum=None, comments="", extra_kd="", place="env"):
    if place == "env":
        import os
        place = int(os.environ["PLACE"], 0) if os.environ.get("PLACE") else None
    if accum is None:
        accum = (vgpr + 3) // 4 * 4
    s = HEADER_COMMENTS
    s += comments
    s += f"; @launch grid=({grid},1,1) block=({block},1,1) lds={lds}\n"
    s += '.amdgcn_target "amdgcn-amd-amdhsa--gfx950"\n.text\n'
    if place is not None:
        s += ".p2align 12\n"
        if (place - 768) % 4096: s += f".fill {((place - 768) % 4096) // 4}, 4, 0xbf810000\n"
    s += f".globl {NAME}\n.p2align 8\n.type {NAME},@function\n{NAME}:\n"
    s += body
    s += '.section .rodata,"a"\n.p2align 6\n'
    s += f".amdhsa_kernel {NAME}\n"
    s += f"  .amdhsa_next_free_vgpr {vgpr}\n  .amdhsa_next_free_sgpr {sgpr}\n  .amdhsa_accum_offset {accum}\n"
    s += "  .amdhsa_group_segment_fixed_size 0\n  .amdhsa_kernarg_size 64\n"
    s += "  .amdhsa_user_sgpr_count 2\n  .amdhsa_user_sgpr_kernarg_segment_ptr 1\n"
    s += "  .amdhsa_system_sgpr_workgroup_id_x 1\n"
    s += extra_kd
    s += ".end_amdhsa_kernel\n"
    return s
```

```python
import sys
from common import *
from asmlib import Asm, Ins
MF = "v_mfma_f32_4x4x4_16b_bf16"
INV_N = "0x3b124925"; NINV_N = "0xbb124925"; EPS = "0x3727c5ac"

def gen(G=4, lf="nt", sf="sc1", ldbar=1, stamps=False, minv=0, gbmfma=True, endbar=True, comments=""):
    wpb = 32 // G
    block, grid = 64 * wpb, 256
    a = Asm()
    p = lambda r: f"v[{r}:{r+1}]"
    q = lambda r: f"v[{r}:{r+3}]"
    COL, SH, K = 0, 2, 3
    AI, AA, T0, S1, S2 = 4, 6, 8, 12, 13
    GB, BB, HB = 16, 24, 32
    XR = 40; FR = XR + 4 * G; GRW = FR + 4 * G
    OF = GRW + 8
    stride = wpb * 896
    per = max(1, 4095 // stride + 1) if stride <= 4095 else 1
    def addr(g): return f"v{OF + g // per}", (g % per) * stride
    if stamps: a("s_memrealtime s[24:25]\ns_load_dwordx2 s[32:33], s[0:1], 56")
    a("s_load_dwordx8 s[4:11], s[0:1], 0        ; x f g b")
    a("s_load_dwordx4 s[12:15], s[0:1], 32")
    a(f"s_cmp_ge_u32 s2, {grid}")
    a("s_cbranch_scc1 L_end")
    a(f"s_mul_i32 s3, s2, {32*896}")
    if stamps: a("v_mov_b32 v15, v0")
    a(f"v_lshrrev_b32 v1, 6, v0")
    a(f"v_and_b32 v{COL}, 63, v0")
    a(f"v_mul_u32_u24 v1, 896, v1")
    a(f"v_lshlrev_b32 v{COL}, 4, v{COL}")
    a(f"v_add3_u32 v{OF}, v1, v{COL}, s3")
    for k in range(1, -(-G // per)):
        a(f"v_add_u32 v{OF+k}, {k*per*stride}, v{OF}")
    a("s_mov_b32 exec_hi, 0x00ffffff")
    a("s_waitcnt lgkmcnt(0)")
    if stamps: a("s_memrealtime s[26:27]")
    for g in range(G):
        r, o = addr(g)
        a(f"global_load_dwordx4 {q(XR+4*g)}, {r}, s[4:5] offset:{o} {lf}")
        a(f"global_load_dwordx4 {q(FR+4*g)}, {r}, s[6:7] offset:{o} {lf}")
        if g == 0:
            a(f"global_load_dwordx4 {q(GRW)}, v{COL}, s[8:9]")
            a(f"global_load_dwordx4 {q(GRW+4)}, v{COL}, s[10:11]")
            a("s_load_dword s16, s[12:13], 0")
        if ldbar and g < G - 1 and (g + 1) % ldbar == 0: a("s_barrier")
    a(f"v_and_b32 v{SH}, 48, v{COL}")
    a("s_mov_b32 s20, 0x3f80")
    a("s_mov_b32 s21, 0")
    a("s_mov_b32 s17, 0")
    a(f"v_lshlrev_b64 {p(AI)}, v{SH}, s[20:21]")
    a(f"v_mov_b32 v{K}, {INV_N}")
    if not gbmfma: a("s_mov_b32 s22, 0xffff0000")
    a("s_waitcnt lgkmcnt(0)")
    a("s_pack_ll_b32_b16 s16, s16, 0")
    a(f"v_lshlrev_b64 {p(AA)}, v{SH}, s[16:17]")
    h = HB
    for g in range(G):
        a(f"s_waitcnt vmcnt({2*(G-1-g)})")
        if stamps and g == G - 1: a("s_memrealtime s[28:29]")
        x, f = XR + 4*g, FR + 4*g
        a(f"{MF} {q(h)}, {p(AA)}, {p(x)}, 0")
        a(f"{MF} {q(h+4)}, {p(AA)}, {p(x+2)}, 0")
        a(f"{MF} {q(h)}, {p(AI)}, {p(f)}, {q(h)}")
        a(f"{MF} {q(h+4)}, {p(AI)}, {p(f+2)}, {q(h+4)}")
        if g == 0:
            for src, dst in ((GRW, GB), (GRW + 4, BB)):
                if gbmfma:
                    a(f"{MF} {q(dst)}, {p(AI)}, {p(src)}, 0")
                    a(f"{MF} {q(dst+4)}, {p(AI)}, {p(src+2)}, 0")
                else:
                    for j in range(4):
                        a(f"v_lshlrev_b32 v{dst+2*j}, 16, v{src+j}")
                        a(f"v_and_b32 v{dst+2*j+1}, s22, v{src+j}")
        a("s_call_b64 s[18:19], L_row")
        for i in range(4): a(f"v_cvt_pk_bf16_f32 v{f+i}, v{h+2*i}, v{h+2*i+1}")
        if not endbar:
            r, o = addr(g); a(f"global_store_dwordx4 {r}, {q(FR+4*g)}, s[14:15] offset:{o} {sf}")
    if endbar:
        a("s_barrier")
        for g in range(G):
            r, o = addr(g)
            a(f"global_store_dwordx4 {r}, {q(FR+4*g)}, s[14:15] offset:{o} {sf}")
    if stamps:
        a("s_waitcnt vmcnt(0)\ns_memrealtime s[30:31]\ns_waitcnt lgkmcnt(0)")
        a("s_mov_b64 exec, -1")
        a("v_lshrrev_b32 v1, 6, v15")
        a(f"s_mul_i32 s3, s2, {block//64}")
        a("v_add_u32 v1, s3, v1\nv_lshlrev_b32 v1, 5, v1")
        for i in range(4): a(f"v_mov_b32 v{8+i}, s{24+i}")
        for i in range(4): a(f"v_mov_b32 v{4+i}, s{28+i}")
        a("s_mov_b64 exec, 1")
        a("global_store_dwordx4 v1, v[8:11], s[32:33]\nglobal_store_dwordx4 v1, v[4:7], s[32:33] offset:16")
    a("L_end:")
    a("s_endpgm")
    a("L_row:")
    a("s_nop 2")
    a(f"v_pk_add_f32 {p(T0)}, {p(h)}, {p(h+2)}")
    a(f"v_pk_add_f32 {p(T0+2)}, {p(h+4)}, {p(h+6)}")
    a(f"v_pk_add_f32 {p(T0)}, {p(T0)}, {p(T0+2)}")
    a(f"v_add_f32 v{S1}, v{T0}, v{T0+1}")
    D = "row_mask:0xf bank_mask:0xf"
    def reduce(v):
        a(f"v_add_f32_dpp v{v}, v{v}, v{v} quad_perm:[1,0,3,2] {D}")
        a(f"v_add_f32_dpp v{v}, v{v}, v{v} quad_perm:[2,3,0,1] {D}")
        a(f"v_add_f32_dpp v{v}, v{v}, v{v} row_half_mirror {D}")
        a(f"v_add_f32_dpp v{v}, v{v}, v{v} row_mirror {D} bound_ctrl:1")
        a(f"v_add_f32_dpp v{v}, v{v}, v{v} row_bcast:15 row_mask:0xa bank_mask:0xf")
        a(f"v_add_f32_dpp v{v}, v{v}, v{v} row_bcast:31 row_mask:0xc bank_mask:0xf")
    bc = "s[36:37] op_sel_hi:[1,0]"
    reduce(S1)
    a(f"v_mul_f32 v{S1}, {NINV_N}, v{S1}           ; -mean")
    a(f"v_readlane_b32 s36, v{S1}, 48")
    for i in range(4): a(f"v_pk_add_f32 {p(h+2*i)}, {p(h+2*i)}, {bc}")
    a(f"v_pk_mul_f32 {p(T0)}, {p(h)}, {p(h)}")
    for i in range(1, 4): a(f"v_pk_fma_f32 {p(T0)}, {p(h+2*i)}, {p(h+2*i)}, {p(T0)}")
    a(f"v_add_f32 v{S2}, v{T0}, v{T0+1}")
    reduce(S2)
    a(f"v_fmaak_f32 v{S2}, v{S2}, v{K}, {EPS}")
    a(f"v_rsq_f32 v{S2}, v{S2}")
    a(f"v_readlane_b32 s36, v{S2}, 48")
    for i in range(4): a(f"v_pk_mul_f32 {p(h+2*i)}, {p(h+2*i)}, {bc}")
    for i in range(4): a(f"v_pk_fma_f32 {p(h+2*i)}, {p(h+2*i)}, {p(GB+2*i)}, {p(BB+2*i)}")
    a("s_setpc_b64 s[18:19]")
    body = a.finish()
    return wrap(body, grid, block, max(a.high("v"), minv), max(a.high("s"), 24), comments=comments)

def build(name):
    d = dict(G="4", l="n", s="c", r="1", z="0", v="0", g="1", w="1")
    for tok in name.split("_")[1:]: d[tok[0]] = tok[1:]
    fl = {"p": "", "n": "nt", "c": "sc1", "d": "sc0 sc1", "e": "sc1 nt"}
    return gen(G=int(d["G"]), lf=fl[d["l"]], sf=fl[d["s"]], ldbar=int(d["r"]), stamps=d["z"] == "1", minv=int(d["v"]), gbmfma=d["g"] == "1", endbar=d["w"] == "1")
if __name__ == "__main__":
    for n in sys.argv[1:]:
        import os
        base, _, pl = n.partition("_A")
        os.environ["PLACE"] = ("0x%s00" % (pl or "3")) if "_A" in n else ""
        open(f"../var/{n}.s", "w").write(build(base))
```

```python
import sys
from common import *
from asmlib import Asm, Ins
MF = "v_mfma_f32_4x4x4_16b_bf16"
INV_N = "0x3b124925"
NINV_N = "0xbb124925"
EPS = "0x3727c5ac"

def gen(R=1, block=256, mode="fp32", lf="", sf="", touch="", gbmfma=False, stamps=False, xcd=False, hops=0,
        alpha_const=False, gb_last=False, comments="", split=None, barrier=False, fence=0, wb=None):
    wpb = block // 64
    rows_wg = R * wpb
    grid = 8192 // rows_wg
    a = Asm()
    p = lambda r: f"v[{r}:{r+1}]"
    q = lambda r: f"v[{r}:{r+3}]"
    sp = lambda r: f"s[{r}:{r+1}]"
    COL, OFF, SH, K = 0, 1, 2, 3
    AI, AA = 4, 6
    T0 = 8
    S1 = 12; S2 = S1 + R
    GB = (S2 + R + 3) // 4 * 4; BB = GB + 8
    XR = BB + 8; FR = XR + 4 * R; HB = FR + 4 * R
    MD = HB + 8 * R
    GR = (MD + 1 + 3) // 4 * 4 if (mode != "fp32") else MD
    FN = GR + (8 if gb_last else 0)
    SM = 36
    bias = 3584 if R > 4 else 0
    ro = lambda r: r * 896 - bias
    rh = mode in ("h", "exact"); exact = mode == "exact"
    if stamps: a("s_memrealtime s[24:25]\ns_load_dwordx2 s[32:33], s[0:1], 56")
    a("s_load_dwordx8 s[4:11], s[0:1], 0        ; x f g b")
    a("s_load_dwordx4 s[12:15], s[0:1], 32")
    a(f"s_cmp_ge_u32 s2, {grid}")
    a("s_cbranch_scc1 L_end")
    if xcd:
        a("s_and_b32 s20, s2, 7")
        a("s_lshr_b32 s21, s2, 3")
        a(f"s_mul_i32 s20, s20, {grid//8}")
        a("s_add_u32 s20, s20, s21")
        a(f"s_mul_i32 s3, s20, {rows_wg*896}")
    else:
        a(f"s_mul_i32 s3, s2, {rows_wg*896}")
    if stamps: a("v_mov_b32 v127, v0")
    a(f"v_lshrrev_b32 v{OFF}, 6, v0")
    if hops: a(f"v_readfirstlane_b32 s34, v{OFF}")
    if wb: a(f"v_readfirstlane_b32 s35, v{OFF}")
    a(f"v_and_b32 v{COL}, 63, v0")
    a(f"v_mul_u32_u24 v{OFF}, {896*R}, v{OFF}")
    a(f"v_lshlrev_b32 v{COL}, 4, v{COL}")
    a(f"v_add3_u32 v{OFF}, v{OFF}, v{COL}, s3")
    if bias: a(f"v_add_u32 v{OFF}, {bias}, v{OFF}")
    if touch == "w": a(f"v_sub_u32 v{SH}, v{OFF}, v{COL}")
    if R > 1:
        for r in range(0, 2 * R, 2): a(f"v_mov_b64 {p(S1 + r)}, 0")
    if R == 8: a(f"v_mov_b32 v{K}, {INV_N}")
    a("s_mov_b32 exec_hi, 0x00ffffff")
    a("s_waitcnt lgkmcnt(0)")
    if stamps: a("s_memrealtime s[26:27]")
    def ldgb():
        a(f"global_load_dwordx4 {q(HB)}, v{COL}, s[8:9]")
        a(f"global_load_dwordx4 {q(HB+4)}, v{COL}, s[10:11]")
    if touch == "w":
        a(f"global_store_dword v{SH}, v{SH}, s[14:15] offset:{ro(0)}")
    if not gb_last: ldgb()
    for r in range(R):
        a(f"global_load_dwordx4 {q(XR+4*r)}, v{OFF}, s[4:5] offset:{ro(r)} {lf}")
        a(f"global_load_dwordx4 {q(FR+4*r)}, v{OFF}, s[6:7] offset:{ro(r)} {lf}")
    if gb_last:
        a(f"global_load_dwordx4 {q(GR)}, v{COL}, s[8:9]")
        a(f"global_load_dwordx4 {q(GR+4)}, v{COL}, s[10:11]")
    if not alpha_const: a("s_load_dword s16, s[12:13], 0")
    if touch == "s": a("s_load_dword s23, s[14:15], s3")
    a(f"v_and_b32 v{SH}, 48, v{COL}")
    a("s_mov_b32 s20, 0x3f80")
    a("s_mov_b32 s21, 0")
    a("s_mov_b32 s17, 0")
    a(f"v_lshlrev_b64 {p(AI)}, v{SH}, s[20:21]")
    if R != 8: a(f"v_mov_b32 v{K}, {INV_N}")
    if not gbmfma: a("s_mov_b32 s22, 0xffff0000")
    if hops:
        for hp in range(hops):
            a(f"s_cmp_eq_u32 s34, {hp}")
            a(f"s_cbranch_scc1 L_hop{hp}")
        a("L_hopped:")
        a("s_cmp_eq_u32 s17, 1")
    body_start = len(a.ins)
    def unpack_gb(srcg, srcb):
        for src, dst in ((srcg, GB), (srcb, BB)):
            if gbmfma:
                a(f"{MF} {q(dst)}, {p(AI)}, {p(src)}, 0")
                a(f"{MF} {q(dst+4)}, {p(AI)}, {p(src+2)}, 0")
            else:
                for j in range(4):
                    a(f"v_lshlrev_b32 v{dst+2*j}, 16, v{src+j}")
                    a(f"v_and_b32 v{dst+2*j+1}, s22, v{src+j}")
    if not gb_last:
        a(f"s_waitcnt vmcnt({2*R})")
        unpack_gb(HB, HB + 4)
    if alpha_const:
        a("s_mov_b32 s16, 0x4000")
    else:
        a("s_waitcnt lgkmcnt(0)")
        a("s_pack_ll_b32_b16 s16, s16, 0")
    a(f"v_lshlrev_b64 {p(AA)}, v{SH}, s[16:17]")
    def rnd(r, c0="0", c1="0"):
        h = HB + 8*r
        for j in range(4): a(f"v_cvt_pk_bf16_f32 v{XR+4*r+j}, v{h+2*j}, v{h+2*j+1}")
        return [f"{MF} {q(h)}, {p(AI)}, {p(XR+4*r)}, {c0}", f"{MF} {q(h+4)}, {p(AI)}, {p(XR+4*r+2)}, {c1}"]
    D = "row_mask:0xf bank_mask:0xf"
    fill = []
    a0_ = a
    def a_(t):
        if "_dpp" in t:
            for _ in range(2):
                if fill: a0_.ins.append(fill.pop(0))
        a0_(t)
    def reduce(base):
        regs_ = [base + r for r in range(R)]
        if R == 1:
            v = base
            a_(f"v_add_f32_dpp v{v}, v{v}, v{v} quad_perm:[1,0,3,2] {D}")
            a_(f"v_add_f32_dpp v{v}, v{v}, v{v} quad_perm:[2,3,0,1] {D}")
            a_(f"v_add_f32_dpp v{v}, v{v}, v{v} row_half_mirror {D}")
            a_(f"v_add_f32_dpp v{v}, v{v}, v{v} row_mirror {D} bound_ctrl:1")
            a_(f"v_add_f32_dpp v{v}, v{v}, v{v} row_bcast:15 row_mask:0xa bank_mask:0xf")
            a_(f"v_add_f32_dpp v{v}, v{v}, v{v} row_bcast:31 row_mask:0xc bank_mask:0xf")
            return v, [48]
        a("s_mov_b32 exec_hi, -1")
        lanes = [0] * R
        nxt = []
        for i in range(0, R, 2):
            a(f"v_permlane32_swap_b32 v{regs_[i]}, v{regs_[i+1]}")
        for i in range(0, R, 2):
            a(f"v_add_f32 v{regs_[i]}, v{regs_[i]}, v{regs_[i+1]}")
            nxt.append(regs_[i]); lanes[i+1] += 32
        regs_ = nxt
        if R >= 4:
            nxt = []
            for i in range(0, len(regs_), 2):
                a(f"v_permlane16_swap_b32 v{regs_[i]}, v{regs_[i+1]}")
            for i in range(0, len(regs_), 2):
                a(f"v_add_f32 v{regs_[i]}, v{regs_[i]}, v{regs_[i+1]}")
                nxt.append(regs_[i])
            for r in range(R):
                if (r >> 1) & 1: lanes[r] += 16
            regs_ = nxt
        v = regs_[0]
        if R == 8:
            a_(f"v_add_f32_dpp v{v}, v{v}, v{v} row_ror:8 row_mask:0xf bank_mask:0x3")
            a_(f"v_add_f32_dpp v{v}, v{regs_[1]}, v{regs_[1]} row_ror:8 row_mask:0xf bank_mask:0xc")
            for r in range(4, 8): lanes[r] += 8
        a_(f"v_add_f32_dpp v{v}, v{v}, v{v} quad_perm:[1,0,3,2] {D}")
        a_(f"v_add_f32_dpp v{v}, v{v}, v{v} quad_perm:[2,3,0,1] {D}")
        a_(f"v_add_f32_dpp v{v}, v{v}, v{v} row_half_mirror {D}")
        if R < 8: a_(f"v_add_f32_dpp v{v}, v{v}, v{v} row_mirror {D}")
        if R == 2:
            a_(f"v_add_f32_dpp v{v}, v{v}, v{v} row_bcast:15 row_mask:0xa bank_mask:0xf")
            lanes = [16, 48]
        return v, lanes
    def bcast(v, lanes):
        for r in range(R): a(f"v_readlane_b32 s{SM+2*r}, v{v}, {lanes[r]}")
        if R > 1: a("s_mov_b32 exec_hi, 0x00ffffff")
    nld = 2 if gb_last else 0
    for r in range(R):
        a(f"s_waitcnt vmcnt({2*(R-1-r) + nld})")
        if stamps and r == R - 1: a("s_memrealtime s[28:29]")
        if fence == 1 and r == R - 1:
            a(f"global_load_dword v{FN}, v{COL}, s[8:9]")
        h = HB + 8*r
        a(f"{MF} {q(h)}, {p(AA)}, {p(XR+4*r)}, 0")
        a(f"{MF} {q(h+4)}, {p(AA)}, {p(XR+4*r+2)}, 0")
        a(f"{MF} {q(h)}, {p(AI)}, {p(FR+4*r)}, {q(h)}")
        a(f"{MF} {q(h+4)}, {p(AI)}, {p(FR+4*r+2)}, {q(h+4)}")
        if rh:
            for m_ in rnd(r): a(m_)
        a(f"v_pk_add_f32 {p(T0)}, {p(h)}, {p(h+2)}")
        a(f"v_pk_add_f32 {p(T0+2)}, {p(h+4)}, {p(h+6)}")
        a(f"v_pk_add_f32 {p(T0)}, {p(T0)}, {p(T0+2)}")
        a(f"v_add_f32 v{S1+r}, v{T0}, v{T0+1}")
    if gb_last:
        a("s_waitcnt vmcnt(0)")
        n0 = len(a.ins); unpack_gb(GR, GR + 4); fill.extend(a.ins[n0:]); del a.ins[n0:]
    v, lanes = reduce(S1)
    a(f"v_mul_f32 v{v}, {NINV_N}, v{v}           ; -mean")
    if rh:
        a(f"v_cvt_pk_bf16_f32 v{T0}, v{v}, v{v}")
        a(f"v_lshlrev_b32 v{T0}, 16, v{T0}")
        bcast(T0, lanes)
        if R > 1: a.ins.pop()
        a(f"v_sub_f32 v{MD}, v{v}, v{T0}")
        a(f"v_mul_f32 v{MD}, v{MD}, v{MD}")
        if R > 1: a("s_mov_b32 exec_hi, 0x00ffffff")
    else:
        bcast(v, lanes)
    bc = "op_sel_hi:[1,0]"
    for r in range(R):
        h = HB + 8*r
        for j in range(4): a(f"v_pk_add_f32 {p(h+2*j)}, {p(h+2*j)}, {sp(SM+2*r)} {bc}")
        a(f"v_pk_mul_f32 {p(T0)}, {p(h)}, {p(h)}")
        for j in range(1, 4): a(f"v_pk_fma_f32 {p(T0)}, {p(h+2*j)}, {p(h+2*j)}, {p(T0)}")
        a(f"v_add_f32 v{S2+r}, v{T0}, v{T0+1}")
    if exact:
        ms = []
        for r in range(R): ms += rnd(r)
        for m_ in ms: a(m_)
    v, lanes = reduce(S2)
    if rh:
        a(f"v_fma_f32 v{v}, v{v}, v{K}, -v{MD}")
        a(f"v_cvt_pk_bf16_f32 v{v}, v{v}, v{v}")
        a(f"v_lshlrev_b32 v{v}, 16, v{v}")
        a(f"v_add_f32 v{v}, {EPS}, v{v}")
        a(f"v_cvt_pk_bf16_f32 v{v}, v{v}, v{v}")
        a(f"v_lshlrev_b32 v{v}, 16, v{v}")
        a(f"v_sqrt_f32 v{v}, v{v}")
        a(f"v_cvt_pk_bf16_f32 v{v}, v{v}, v{v}")
        a(f"v_lshlrev_b32 v{v}, 16, v{v}")
        a(f"v_rcp_f32 v{v}, v{v}")
    else:
        a(f"v_fmaak_f32 v{v}, v{v}, v{K}, {EPS}")
        a(f"v_rsq_f32 v{v}, v{v}")
    bcast(v, lanes)
    a.ins.extend(fill); fill.clear()
    def store(r):
        if split is not None and R == 1:
            thr, sf2 = split
            a(f"s_cmp_ge_u32 s2, {int(grid * thr)}")
            a("s_cbranch_scc1 L_st2")
            a(f"global_store_dwordx4 v{OFF}, {q(FR+4*r)}, s[14:15] offset:{ro(r)} {sf}")
            if stamps: a("s_branch L_st3")
            else: a("s_endpgm")
            a("L_st2:")
            a(f"global_store_dwordx4 v{OFF}, {q(FR+4*r)}, s[14:15] offset:{ro(r)} {sf2}")
            a("L_st3:")
            return
        a(f"global_store_dwordx4 v{OFF}, {q(FR+4*r)}, s[14:15] offset:{ro(r)} {sf}")
    if exact:
        ms = []
        for r in range(R):
            h = HB + 8*r
            for j in range(4): a(f"v_pk_mul_f32 {p(h+2*j)}, {p(h+2*j)}, {sp(SM+2*r)} {bc}")
            ms += rnd(r)
        for m_ in ms: a(m_)
        ms = []
        for r in range(R):
            h = HB + 8*r
            for j in range(4): a(f"v_pk_mul_f32 {p(h+2*j)}, {p(h+2*j)}, {p(GB+2*j)}")
            ms += rnd(r, q(BB), q(BB+4))
        for m_ in ms: a(m_)
        for r in range(R):
            h = HB + 8*r
            for j in range(4): a(f"v_cvt_pk_bf16_f32 v{FR+4*r+j}, v{h+2*j}, v{h+2*j+1}")
            store(r)
    else:
        for r in range(R):
            h = HB + 8*r
            for j in range(4): a(f"v_pk_mul_f32 {p(h+2*j)}, {p(h+2*j)}, {sp(SM+2*r)} {bc}")
            for j in range(4): a(f"v_pk_fma_f32 {p(h+2*j)}, {p(h+2*j)}, {p(GB+2*j)}, {p(BB+2*j)}")
            for j in range(4): a(f"v_cvt_pk_bf16_f32 v{FR+4*r+j}, v{h+2*j}, v{h+2*j+1}")
            if fence and r == 0:
                if fence == 2: a(f"global_load_dword v{FN}, v{COL}, s[8:9]")
                a("s_waitcnt vmcnt(0)")
            if not barrier: store(r)
        if barrier:
            a("s_barrier")
            for r in range(R): store(r)
    if wb:
        mask, waitst = wb
        a("s_and_b32 s20, s2, 0xf8")
        a("s_cmp_eq_u32 s20, 0xf8")
        a("s_cbranch_scc0 L_nowb")
        a("s_lshr_b32 s20, s2, 8")
        a(f"s_lshr_b32 s20, {mask}, s20")
        a("s_and_b32 s20, s20, 1")
        a("s_cbranch_scc0 L_nowb")
        a("s_cmp_eq_u32 s35, 0")
        a("s_cbranch_scc0 L_nowb")
        if waitst: a("s_waitcnt vmcnt(0)")
        a("buffer_wbl2 sc1")
        a("L_nowb:")
    body_end = len(a.ins)
    if hops:
        n = body_end - body_start
        for i_ in a.ins[body_start:body_end]:
            assert not i_.op.startswith("s_") or i_.op in ("s_waitcnt", "s_mov_b32", "s_mov_b64", "s_nop", "s_pack_ll_b32_b16", "s_memrealtime"), i_.text
        for hp in reversed(range(hops)):
            at = body_start + (n * (hp + 1)) // hops - (1 if hp == hops - 1 else 0)
            a.ins[at:at] = [Ins(f"L_hop{hp}:"), Ins("s_cbranch_scc1 L_hopped")]
    if stamps:
        a("s_waitcnt vmcnt(0)\ns_memrealtime s[30:31]\ns_waitcnt lgkmcnt(0)")
        a("s_mov_b64 exec, -1")
        a("v_lshrrev_b32 v1, 6, v127")
        a(f"s_mul_i32 s3, s2, {block//64}")
        a("v_add_u32 v1, s3, v1\nv_lshlrev_b32 v1, 5, v1")
        for i in range(8): a(f"v_mov_b32 v{8+i}, s{24+i}")
        a("s_mov_b64 exec, 1")
        a("global_store_dwordx4 v1, v[8:11], s[32:33]\nglobal_store_dwordx4 v1, v[12:15], s[32:33] offset:16")
    nv = None
    a("L_end:")
    a("s_endpgm")
    body = a.finish()
    nv = a.high("v")
    if stamps:
        top = max(GR + 9, 16)
        body = body.replace("v127", f"v{top}"); nv = top + 1
    return wrap(body, grid, block, nv, max(a.high("s"), 24), comments=comments)

if __name__ == "__main__":
    for R in (1, 2, 4, 8):
        for mode in ("fp32", "h", "exact"):
            for st in (False, True):
                open(f"../var/A{R}_{mode}{'_st' if st else ''}.s", "w").write(gen(R=R, mode=mode, stamps=st))
```

```python
import sys, re
from gen_a import gen
def build(name):
    d = dict(R="1", t="n", l="p", s="p", x="0", g="0", a="0", h="0", b="256", m="f", o="0", z="0")
    for tok in name.split("_"):
        d[tok[0]] = tok[1:]
    fl = {"p": "", "n": "nt", "c": "sc1", "d": "sc0 sc1", "e": "sc1 nt", "f": "sc0 sc1 nt", "g": "sc0", "h": "sc0 nt"}
    split = (int(d["y"][1:]) / 8, fl[d["y"][0]]) if "y" in d else None
    return gen(R=int(d["R"]), touch={"n": ""}.get(d["t"], d["t"]), lf=fl[d["l"]], sf=fl[d["s"]], xcd=d["x"] == "1",
               gbmfma=d["g"] == "1", alpha_const=d["a"] == "1", hops=int(d["h"]), block=int(d["b"]),
               mode={"f": "fp32", "h": "h", "e": "exact"}[d["m"]], gb_last=d["o"] == "1", stamps=d["z"] == "1", split=split, barrier=d.get('w') == '1', fence=int(d.get('f', '0')), wb=(int(d['k'][1:], 16), d['k'][0] == 'w') if 'k' in d else None)
if __name__ == "__main__":
    for n in sys.argv[1:]:
        import os
        base, _, pl = n.partition("_A")
        os.environ["PLACE"] = ("0x%s00" % (pl or "3")) if "_A" in n else ""
        open(f"../var/{n}.s", "w").write(build(base))
```

```python
import sys
from common import *
from asmlib import Asm, Ins
MF = "v_mfma_f32_4x4x4_16b_bf16"
INV_N = "0x3b124925"; NINV_N = "0xbb124925"; EPS = "0x3727c5ac"

def gen(G=4, lf="nt", sf="sc1", ldbar=1, stamps=False, minv=0, gbmfma=True, endbar=True, comments="", depth=0, nearly=0, esf=None, touch="", splitw=False):
    wpb = 32 // G
    block, grid = 64 * wpb, 256
    a = Asm()
    p = lambda r: f"v[{r}:{r+1}]"
    q = lambda r: f"v[{r}:{r+3}]"
    COL, SH, K = 0, 2, 3
    AI, AA, T0, S1, S2 = 4, 6, 8, 12, 13
    GB, BB, HB = 16, 24, 32
    XR = 40; FR = XR + 4 * G; GRW = FR + 4 * G
    OF = GRW + 8
    stride = wpb * 896
    per = max(1, 4095 // stride + 1) if stride <= 4095 else 1
    def addr(g): return f"v{OF + g // per}", (g % per) * stride
    if stamps: a("s_memrealtime s[24:25]\ns_load_dwordx2 s[32:33], s[0:1], 56")
    a("s_load_dwordx8 s[4:11], s[0:1], 0        ; x f g b")
    a("s_load_dwordx4 s[12:15], s[0:1], 32")
    a(f"s_cmp_ge_u32 s2, {grid}")
    a("s_cbranch_scc1 L_end")
    a(f"s_mul_i32 s3, s2, {32*896}")
    if stamps: a("v_mov_b32 v15, v0")
    a(f"v_lshrrev_b32 v1, 6, v0")
    a(f"v_and_b32 v{COL}, 63, v0")
    a(f"v_mul_u32_u24 v1, 896, v1")
    a(f"v_lshlrev_b32 v{COL}, 4, v{COL}")
    a(f"v_add3_u32 v{OF}, v1, v{COL}, s3")
    for k in range(1, -(-G // per)):
        a(f"v_add_u32 v{OF+k}, {k*per*stride}, v{OF}")
    if touch and touch[0] == "w": a(f"v_sub_u32 v1, v{OF}, v{COL}")
    a("s_mov_b32 exec_hi, 0x00ffffff")
    a("s_waitcnt lgkmcnt(0)")
    if stamps: a("s_memrealtime s[26:27]")
    depth = depth or G
    queue = []
    def ld(g):
        r, o = addr(g)
        a(f"global_load_dwordx4 {q(XR+4*g)}, {r}, s[4:5] offset:{o} {lf}")
        a(f"global_load_dwordx4 {q(FR+4*g)}, {r}, s[6:7] offset:{o} {lf}")
        queue.extend([("l", g)] * 2)
    for g in range(depth):
        ld(g)
        if g == 0:
            queue.extend([("l", 0)] * 2)
            a(f"global_load_dwordx4 {q(GRW)}, v{COL}, s[8:9]")
            a(f"global_load_dwordx4 {q(GRW+4)}, v{COL}, s[10:11]")
            a("s_load_dword s16, s[12:13], 0")
            if touch == "s": a("s_load_dword s23, s[14:15], s3")
            if touch and touch[0] == "w":
                a(f"global_store_dword v1, v1, s[14:15] {'sc1' if touch == 'wc' else ''}")
                queue.append(("s", -1))
        if ldbar and g < depth - 1 and (g + 1) % ldbar == 0: a("s_barrier")
    a(f"v_and_b32 v{SH}, 48, v{COL}")
    a("s_mov_b32 s20, 0x3f80")
    a("s_mov_b32 s21, 0")
    a("s_mov_b32 s17, 0")
    a(f"v_lshlrev_b64 {p(AI)}, v{SH}, s[20:21]")
    a(f"v_mov_b32 v{K}, {INV_N}")
    if not gbmfma: a("s_mov_b32 s22, 0xffff0000")
    a("s_waitcnt lgkmcnt(0)")
    a("s_pack_ll_b32_b16 s16, s16, 0")
    a(f"v_lshlrev_b64 {p(AA)}, v{SH}, s[16:17]")
    h = HB
    for g in range(G):
        idx = [i for i, t in enumerate(queue) if t == ("l", g)]
        n_after = lambda i: len(queue) - 1 - i
        x, f = XR + 4*g, FR + 4*g
        if splitw:
            a(f"s_waitcnt vmcnt({n_after(idx[0])})")
            a(f"{MF} {q(h)}, {p(AA)}, {p(x)}, 0")
            a(f"{MF} {q(h+4)}, {p(AA)}, {p(x+2)}, 0")
            a(f"s_waitcnt vmcnt({n_after(idx[-1])})")
            if stamps and g == G - 1: a("s_memrealtime s[28:29]")
            if g + depth < G: ld(g + depth)
        else:
            a(f"s_waitcnt vmcnt({n_after(idx[-1])})")
            if g + depth < G: ld(g + depth)
            if stamps and g == G - 1: a("s_memrealtime s[28:29]")
            a(f"{MF} {q(h)}, {p(AA)}, {p(x)}, 0")
            a(f"{MF} {q(h+4)}, {p(AA)}, {p(x+2)}, 0")
        a(f"{MF} {q(h)}, {p(AI)}, {p(f)}, {q(h)}")
        a(f"{MF} {q(h+4)}, {p(AI)}, {p(f+2)}, {q(h+4)}")
        if g == 0:
            for src, dst in ((GRW, GB), (GRW + 4, BB)):
                if gbmfma:
                    a(f"{MF} {q(dst)}, {p(AI)}, {p(src)}, 0")
                    a(f"{MF} {q(dst+4)}, {p(AI)}, {p(src+2)}, 0")
                else:
                    for j in range(4):
                        a(f"v_lshlrev_b32 v{dst+2*j}, 16, v{src+j}")
                        a(f"v_and_b32 v{dst+2*j+1}, s22, v{src+j}")
        a("s_call_b64 s[18:19], L_row")
        for i in range(4): a(f"v_cvt_pk_bf16_f32 v{f+i}, v{h+2*i}, v{h+2*i+1}")
        if not endbar or g < nearly:
            r, o = addr(g); a(f"global_store_dwordx4 {r}, {q(FR+4*g)}, s[14:15] offset:{o} {esf if esf is not None else sf}")
            queue.append(("s", g))
    if endbar:
        a("s_barrier")
        for g in range(nearly, G):
            r, o = addr(g)
            a(f"global_store_dwordx4 {r}, {q(FR+4*g)}, s[14:15] offset:{o} {sf}")
    if stamps:
        a("s_waitcnt vmcnt(0)\ns_memrealtime s[30:31]\ns_waitcnt lgkmcnt(0)")
        a("s_mov_b64 exec, -1")
        a("v_lshrrev_b32 v1, 6, v15")
        a(f"s_mul_i32 s3, s2, {block//64}")
        a("v_add_u32 v1, s3, v1\nv_lshlrev_b32 v1, 5, v1")
        for i in range(4): a(f"v_mov_b32 v{8+i}, s{24+i}")
        for i in range(4): a(f"v_mov_b32 v{4+i}, s{28+i}")
        a("s_mov_b64 exec, 1")
        a("global_store_dwordx4 v1, v[8:11], s[32:33]\nglobal_store_dwordx4 v1, v[4:7], s[32:33] offset:16")
    a("L_end:")
    a("s_endpgm")
    a("L_row:")
    a("s_nop 2")
    a(f"v_pk_add_f32 {p(T0)}, {p(h)}, {p(h+2)}")
    a(f"v_pk_add_f32 {p(T0+2)}, {p(h+4)}, {p(h+6)}")
    a(f"v_pk_add_f32 {p(T0)}, {p(T0)}, {p(T0+2)}")
    a(f"v_add_f32 v{S1}, v{T0}, v{T0+1}")
    D = "row_mask:0xf bank_mask:0xf"
    def reduce(v):
        a(f"v_add_f32_dpp v{v}, v{v}, v{v} quad_perm:[1,0,3,2] {D}")
        a(f"v_add_f32_dpp v{v}, v{v}, v{v} quad_perm:[2,3,0,1] {D}")
        a(f"v_add_f32_dpp v{v}, v{v}, v{v} row_half_mirror {D}")
        a(f"v_add_f32_dpp v{v}, v{v}, v{v} row_mirror {D} bound_ctrl:1")
        a(f"v_add_f32_dpp v{v}, v{v}, v{v} row_bcast:15 row_mask:0xa bank_mask:0xf")
        a(f"v_add_f32_dpp v{v}, v{v}, v{v} row_bcast:31 row_mask:0xc bank_mask:0xf")
    bc = "s[36:37] op_sel_hi:[1,0]"
    reduce(S1)
    a(f"v_mul_f32 v{S1}, {NINV_N}, v{S1}           ; -mean")
    a(f"v_readlane_b32 s36, v{S1}, 48")
    for i in range(4): a(f"v_pk_add_f32 {p(h+2*i)}, {p(h+2*i)}, {bc}")
    a(f"v_pk_mul_f32 {p(T0)}, {p(h)}, {p(h)}")
    for i in range(1, 4): a(f"v_pk_fma_f32 {p(T0)}, {p(h+2*i)}, {p(h+2*i)}, {p(T0)}")
    a(f"v_add_f32 v{S2}, v{T0}, v{T0+1}")
    reduce(S2)
    a(f"v_fmaak_f32 v{S2}, v{S2}, v{K}, {EPS}")
    a(f"v_rsq_f32 v{S2}, v{S2}")
    a(f"v_readlane_b32 s36, v{S2}, 48")
    for i in range(4): a(f"v_pk_mul_f32 {p(h+2*i)}, {p(h+2*i)}, {bc}")
    for i in range(4): a(f"v_pk_fma_f32 {p(h+2*i)}, {p(h+2*i)}, {p(GB+2*i)}, {p(BB+2*i)}")
    a("s_setpc_b64 s[18:19]")
    body = a.finish()
    return wrap(body, grid, block, max(a.high("v"), minv), max(a.high("s"), 24), comments=comments)

def build(name):
    d = dict(G="4", l="n", s="c", r="1", z="0", v="0", g="1", w="1", d="0", n="0")
    for tok in name.split("_")[1:]: d[tok[0]] = tok[1:]
    fl = {"p": "", "n": "nt", "c": "sc1", "d": "sc0 sc1", "e": "sc1 nt"}
    return gen(G=int(d["G"]), lf=fl[d["l"]], sf=fl[d["s"]], ldbar=int(d["r"]), stamps=d["z"] == "1", minv=int(d["v"]), gbmfma=d["g"] == "1", endbar=d["w"] == "1", depth=int(d["d"]), nearly=int(d["n"]), esf=fl[d["e"]] if "e" in d else None, touch=d.get("t", ""), splitw=d.get("k") == "1")
if __name__ == "__main__":
    for n in sys.argv[1:]:
        import os
        base, _, pl = n.partition("_A")
        os.environ["PLACE"] = ("0x%s00" % (pl or "3")) if "_A" in n else ""
        open(f"../var/{n}.s", "w").write(build(base))
```

```python
import sys, os
from common import *
from asmlib import Asm, Ins
MF = "v_mfma_f32_4x4x4_16b_bf16"
INV_N = "0x3b124925"; EPS = "0x3727c5ac"

COMMENTS = """;
"""

def gen(lf="nt", sf="sc1", stamps=False, minv=136, fall=True, comments=COMMENTS, gmajor=0, xcd=False, adj=False):
    G, wpb = 4, 8
    block, grid = 64 * wpb, 256
    a = Asm()
    p = lambda r: f"v[{r}:{r+1}]"
    q = lambda r: f"v[{r}:{r+3}]"
    COL, SH, K = 0, 1, 2
    AI, AA, T0, S1, S2 = 4, 6, 8, 10, 11
    T1 = 12
    GB, BB, HB = 16, 24, 32
    XR = 40; FR = XR + 4 * G; GRW = FR + 4 * G
    OF = GRW + 8
    stride = wpb * 896 * (gmajor or 1)
    h = HB
    if stamps: a("s_memrealtime s[24:25]\ns_load_dwordx2 s[32:33], s[0:1], 56")
    a("s_load_dwordx8 s[4:11], s[0:1], 0        ; x f g b")
    a("s_load_dwordx4 s[12:15], s[0:1], 32")
    a(f"s_cmp_ge_u32 s2, {grid}")
    a("s_cbranch_scc1 L_end")
    if xcd:
        a("s_and_b32 s20, s2, 7")
        a("s_lshr_b32 s21, s2, 3")
        a("s_lshl_b32 s20, s20, 5")
        a("s_add_u32 s2, s20, s21")
    if gmajor and gmajor < grid:
        a(f"s_lshr_b32 s20, s2, {gmajor.bit_length()-1}")
        a(f"s_and_b32 s21, s2, {gmajor-1}")
        a(f"s_mul_i32 s20, s20, {32*896*gmajor}")
        a(f"s_mul_i32 s21, s21, {8*896}")
        a("s_add_u32 s3, s20, s21")
    else:
        a(f"s_mul_i32 s3, s2, {(8 if gmajor else 32)*896}")
    if stamps: a("v_mov_b32 v15, v0")
    a("v_lshrrev_b32 v1, 6, v0                  ; wave")
    a(f"v_and_b32 v{COL}, 63, v0")
    a(f"v_mul_u32_u24 v1, {896 * (G if adj else 1)}, v1")
    a(f"v_lshlrev_b32 v{COL}, 4, v{COL}")
    a(f"v_add3_u32 v{OF}, v1, v{COL}, s3")
    if not adj:
        for k in range(1, G): a(f"v_add_u32 v{OF+k}, {k*stride}, v{OF}")
    ar = (lambda g: f"v{OF}") if adj else (lambda g: f"v{OF+g}")
    ao = (lambda g: f" offset:{896*g}" if g else "") if adj else (lambda g: "")
    a("s_mov_b32 exec_hi, 0x00ffffff")
    a("s_waitcnt lgkmcnt(0)")
    if stamps: a("s_memrealtime s[26:27]")
    for g in range(G):
        a(f"global_load_dwordx4 {q(XR+4*g)}, {ar(g)}, s[4:5]{ao(g)} {lf}")
        a(f"global_load_dwordx4 {q(FR+4*g)}, {ar(g)}, s[6:7]{ao(g)} {lf}")
        if g == 0:
            a(f"global_load_dwordx4 {q(GRW)}, v{COL}, s[8:9]")
            a(f"global_load_dwordx4 {q(GRW+4)}, v{COL}, s[10:11]")
            a("s_load_dword s16, s[12:13], 0")
        if g < G - 1: a("s_barrier")
    a(f"v_and_b32 v{SH}, 48, v{COL}                      ; 16 * (lane & 3)")
    a("s_mov_b32 s20, 0x3f80")
    a("s_mov_b32 s21, 0")
    a("s_mov_b32 s17, 0")
    a(f"v_lshlrev_b64 {p(AI)}, v{SH}, s[20:21]")
    a(f"v_mov_b32 v{K}, {INV_N}                ; 1/448")
    a("s_mov_b32 s22, 0xffff0000")
    if fall: a("s_cmp_eq_u32 s17, 0")
    a("s_waitcnt lgkmcnt(0)")
    a("s_pack_ll_b32_b16 s16, s16, 0")
    a(f"v_lshlrev_b64 {p(AA)}, v{SH}, s[16:17]")
    def cvt(g):
        for i in range(4): a(f"v_cvt_pk_bf16_f32 v{FR+4*g+i}, v{h+2*i}, v{h+2*i+1}")
    def row_code():
        a(f"v_pk_add_f32 {p(T0)}, {p(h)}, {p(h+2)}")
        a(f"v_pk_add_f32 {p(T1)}, {p(h+4)}, {p(h+6)}")
        a(f"v_pk_add_f32 {p(T0)}, {p(T0)}, {p(T1)}")
        a(f"v_add_f32 v{S1}, v{T0}, v{T0+1}")
        D = "row_mask:0xf bank_mask:0xf"
        def reduce(v, fill):
            for ctl in (f"quad_perm:[1,0,3,2] {D}", f"quad_perm:[2,3,0,1] {D}", f"row_half_mirror {D}",
                        f"row_mirror {D} bound_ctrl:1", "row_bcast:15 row_mask:0xa bank_mask:0xf",
                        "row_bcast:31 row_mask:0xc bank_mask:0xf"):
                for _ in range(2):
                    if fill: a(fill.pop(0))
                a(f"v_add_f32_dpp v{v}, v{v}, v{v} {ctl}")
        reduce(S1, [])
        a(f"v_readlane_b32 s36, v{S1}, 48")
        for i in range(4):
            a(f"v_pk_fma_f32 {p(h+2*i)}, s[36:37], {p(K)}, {p(h+2*i)} op_sel_hi:[0,0,1] neg_lo:[1,0,0] neg_hi:[1,0,0]")
        a(f"v_pk_mul_f32 {p(T0)}, {p(h)}, {p(h)}")
        for i in range(1, 4): a(f"v_pk_fma_f32 {p(T0)}, {p(h+2*i)}, {p(h+2*i)}, {p(T0)}")
        a(f"v_add_f32 v{S2}, v{T0}, v{T0+1}")
        reduce(S2, [f"v_pk_mul_f32 {p(h+2*i)}, {p(h+2*i)}, {p(GB+2*i)}" for i in range(4)])
        a(f"v_fmaak_f32 v{S2}, v{S2}, v{K}, {EPS}")
        a(f"v_rsq_f32 v{S2}, v{S2}")
        a(f"v_readlane_b32 s36, v{S2}, 48")
        for i in range(4):
            a(f"v_pk_fma_f32 {p(h+2*i)}, {p(h+2*i)}, s[36:37], {p(BB+2*i)} op_sel_hi:[1,0,1]")
    for g in range(G):
        x, f = XR + 4*g, FR + 4*g
        after = 2 * (G - 1 - g)
        a(f"s_waitcnt vmcnt({after + (3 if g == 0 else 1)})")
        a(f"{MF} {q(h)}, {p(AA)}, {p(x)}, 0")
        a(f"{MF} {q(h+4)}, {p(AA)}, {p(x+2)}, 0")
        a(f"s_waitcnt vmcnt({after})")
        if stamps and g == G - 1: a("s_memrealtime s[28:29]")
        a(f"{MF} {q(h)}, {p(AI)}, {p(f)}, {q(h)}")
        a(f"{MF} {q(h+4)}, {p(AI)}, {p(f+2)}, {q(h+4)}")
        if g == 0:
            for src, dst in ((GRW, GB), (GRW + 4, BB)):
                for j in range(4):
                    a(f"v_lshlrev_b32 v{dst+2*j}, 16, v{src+j}")
                    a(f"v_and_b32 v{dst+2*j+1}, s22, v{src+j}")
        if g < G - 1 or not fall:
            a("s_call_b64 s[18:19], L_row")
            cvt(g)
        else:
            a("s_cmp_lg_u32 s17, 0")
    def epilogue():
        a("s_barrier")
        for g in range(G):
            a(f"global_store_dwordx4 {ar(g)}, {q(FR+4*g)}, s[14:15]{ao(g)} {sf}")
        if stamps:
            a("s_waitcnt vmcnt(0)\ns_memrealtime s[30:31]\ns_waitcnt lgkmcnt(0)")
            a("s_mov_b64 exec, -1")
            a("v_lshrrev_b32 v1, 6, v15")
            a(f"s_mul_i32 s3, s2, {block//64}")
            a("v_add_u32 v1, s3, v1\nv_lshlrev_b32 v1, 5, v1")
            for i in range(4): a(f"v_mov_b32 v{8+i}, s{24+i}")
            for i in range(4): a(f"v_mov_b32 v{4+i}, s{28+i}")
            a("s_mov_b64 exec, 1")
            a("global_store_dwordx4 v1, v[8:11], s[32:33]\nglobal_store_dwordx4 v1, v[4:7], s[32:33] offset:16")
        a("L_end:")
        a("s_endpgm")
    if fall:
        a("L_row:")
        a("s_nop 2")
        row_code()
        a("s_cbranch_scc1 L_ret")
        cvt(G - 1)
        epilogue()
        a("L_ret:")
        a("s_setpc_b64 s[18:19]")
    else:
        epilogue()
        a("L_row:")
        a("s_nop 2")
        row_code()
        a("s_setpc_b64 s[18:19]")
    body = a.finish()
    return wrap(body, grid, block, max(a.high("v"), minv), max(a.high("s"), 24), comments=comments, place=0x300)

def build(name):
    d = dict(l="n", s="c", z="0", v="136", f="1", m="0", x="0", j="0")
    for tok in name.split("_")[1:]: d[tok[0]] = tok[1:]
    fl = {"p": "", "n": "nt", "c": "sc1", "d": "sc0 sc1", "e": "sc1 nt", "f": "sc0 sc1 nt", "g": "sc0", "h": "sc0 nt"}
    return gen(lf=fl[d["l"]], sf=fl[d["s"]], stamps=d["z"] == "1", minv=int(d["v"]), fall=d["f"] == "1", gmajor=int(d["m"]), xcd=d["x"] == "1", adj=d["j"] == "1")
if __name__ == "__main__":
    for n in sys.argv[1:]:
        open(f"../var/{n}.s", "w").write(build(n))
```

```python
import sys, os
from common import *
from asmlib import Asm, Ins
MF = "v_mfma_f32_4x4x4_16b_bf16"
INV_N = "0x3b124925"; EPS = "0x3727c5ac"

COMMENTS = """;
"""

def gen(lf="nt", sf="sc1", stamps=False, minv=136, fall=True, comments=COMMENTS, gmajor=0, xcd=False, adj=False, wpb=8, diag_delay=0, hmode=False):
    G = 4
    block, grid = 64 * wpb, 2048 // wpb
    a = Asm()
    p = lambda r: f"v[{r}:{r+1}]"
    q = lambda r: f"v[{r}:{r+3}]"
    COL, SH, K = 0, 1, 2
    AI, AA, T0, S1, S2 = 4, 6, 8, 10, 11
    T1 = 12
    MD = 14
    GB, BB, HB = 16, 24, 32
    XR = 40; FR = XR + 4 * G; GRW = FR + 4 * G
    OF = GRW + 8
    PK = GRW
    stride = wpb * 896 * (gmajor or 1)
    h = HB
    if stamps: a("s_memrealtime s[24:25]\ns_load_dwordx2 s[32:33], s[0:1], 56")
    a("s_load_dwordx8 s[4:11], s[0:1], 0        ; x f g b")
    a("s_load_dwordx4 s[12:15], s[0:1], 32")
    a(f"s_cmp_ge_u32 s2, {grid}")
    a("s_cbranch_scc1 L_end")
    if xcd:
        a("s_and_b32 s20, s2, 7")
        a("s_lshr_b32 s21, s2, 3")
        a("s_lshl_b32 s20, s20, 5")
        a("s_add_u32 s2, s20, s21")
    if gmajor and gmajor < grid:
        a(f"s_lshr_b32 s20, s2, {gmajor.bit_length()-1}")
        a(f"s_and_b32 s21, s2, {gmajor-1}")
        a(f"s_mul_i32 s20, s20, {32*896*gmajor}")
        a(f"s_mul_i32 s21, s21, {8*896}")
        a("s_add_u32 s3, s20, s21")
    else:
        a(f"s_mul_i32 s3, s2, {(wpb if gmajor else G * wpb)*896}")
    if stamps: a("v_mov_b32 v15, v0")
    a("v_lshrrev_b32 v1, 6, v0                  ; wave")
    a(f"v_and_b32 v{COL}, 63, v0")
    a(f"v_mul_u32_u24 v1, {896 * (G if adj else 1)}, v1")
    a(f"v_lshlrev_b32 v{COL}, 4, v{COL}")
    a(f"v_add3_u32 v{OF}, v1, v{COL}, s3")
    if not adj:
        for k in range(1, G): a(f"v_add_u32 v{OF+k}, {k*stride}, v{OF}")
    ar = (lambda g: f"v{OF}") if adj else (lambda g: f"v{OF+g}")
    ao = (lambda g: f" offset:{896*g}" if g else "") if adj else (lambda g: "")
    a("s_mov_b32 exec_hi, 0x00ffffff")
    a("s_waitcnt lgkmcnt(0)")
    if stamps: a("s_memrealtime s[26:27]")
    for g in range(G):
        a(f"global_load_dwordx4 {q(XR+4*g)}, {ar(g)}, s[4:5]{ao(g)} {lf}")
        a(f"global_load_dwordx4 {q(FR+4*g)}, {ar(g)}, s[6:7]{ao(g)} {lf}")
        if g == 0:
            a(f"global_load_dwordx4 {q(GRW)}, v{COL}, s[8:9]")
            a(f"global_load_dwordx4 {q(GRW+4)}, v{COL}, s[10:11]")
            a("s_load_dword s16, s[12:13], 0")
        if g < G - 1: a("s_barrier")
    a(f"v_and_b32 v{SH}, 48, v{COL}                      ; 16 * (lane & 3)")
    a("s_mov_b32 s20, 0x3f80")
    a("s_mov_b32 s21, 0")
    a("s_mov_b32 s17, 0")
    a(f"v_lshlrev_b64 {p(AI)}, v{SH}, s[20:21]")
    a(f"v_mov_b32 v{K}, {INV_N}                ; 1/448")
    a("s_mov_b32 s22, 0xffff0000")
    if fall: a("s_cmp_eq_u32 s17, 0")
    a("s_waitcnt lgkmcnt(0)")
    a("s_pack_ll_b32_b16 s16, s16, 0")
    a(f"v_lshlrev_b64 {p(AA)}, v{SH}, s[16:17]")
    def cvt(g):
        if hmode:
            if g < G - 1:
                a(f"v_mov_b64 {p(FR+4*g)}, {p(PK)}")
                a(f"v_mov_b64 {p(FR+4*g+2)}, {p(PK+2)}")
            return
        for i in range(4): a(f"v_cvt_pk_bf16_f32 v{FR+4*g+i}, v{h+2*i}, v{h+2*i+1}")
    def cvt_sub():
        for i in range(4): a(f"v_cvt_pk_bf16_f32 v{PK+i}, v{h+2*i}, v{h+2*i+1}")
    def rnd(v):
        a(f"v_cvt_pk_bf16_f32 v{v}, v{v}, v{v}")
        a(f"v_lshlrev_b32 v{v}, 16, v{v}")
    def row_code():
        if hmode:
            cvt_sub()
            a(f"{MF} {q(h)}, {p(AI)}, {p(PK)}, 0             ; h rounded to bf16, as the reference keeps it")
            a(f"{MF} {q(h+4)}, {p(AI)}, {p(PK+2)}, 0")
        a(f"v_pk_add_f32 {p(T0)}, {p(h)}, {p(h+2)}")
        a(f"v_pk_add_f32 {p(T1)}, {p(h+4)}, {p(h+6)}")
        a(f"v_pk_add_f32 {p(T0)}, {p(T0)}, {p(T1)}")
        a(f"v_add_f32 v{S1}, v{T0}, v{T0+1}")
        D = "row_mask:0xf bank_mask:0xf"
        def reduce(v, fill):
            for ctl in (f"quad_perm:[1,0,3,2] {D}", f"quad_perm:[2,3,0,1] {D}", f"row_half_mirror {D}",
                        f"row_mirror {D} bound_ctrl:1", "row_bcast:15 row_mask:0xa bank_mask:0xf",
                        "row_bcast:31 row_mask:0xc bank_mask:0xf"):
                for _ in range(2):
                    if fill: a(fill.pop(0))
                a(f"v_add_f32_dpp v{v}, v{v}, v{v} {ctl}")
        reduce(S1, [])
        if hmode:
            a(f"v_mul_f32 v{S1}, v{K}, v{S1}                 ; mean")
            a(f"v_cvt_pk_bf16_f32 v{MD}, v{S1}, v{S1}")
            a(f"v_lshlrev_b32 v{MD}, 16, v{MD}")
            a(f"v_sub_f32 v{S1}, v{S1}, v{MD}")
            a(f"v_readlane_b32 s36, v{MD}, 48")
            a(f"v_mul_f32 v{MD}, v{S1}, v{S1}")
            for i in range(4):
                a(f"v_pk_add_f32 {p(h+2*i)}, {p(h+2*i)}, s[36:37] op_sel_hi:[1,0] neg_lo:[0,1] neg_hi:[0,1]")
        else:
            a(f"v_readlane_b32 s36, v{S1}, 48")
            for i in range(4):
                a(f"v_pk_fma_f32 {p(h+2*i)}, s[36:37], {p(K)}, {p(h+2*i)} op_sel_hi:[0,0,1] neg_lo:[1,0,0] neg_hi:[1,0,0]")
        a(f"v_pk_mul_f32 {p(T0)}, {p(h)}, {p(h)}")
        for i in range(1, 4): a(f"v_pk_fma_f32 {p(T0)}, {p(h+2*i)}, {p(h+2*i)}, {p(T0)}")
        a(f"v_add_f32 v{S2}, v{T0}, v{T0+1}")
        reduce(S2, [f"v_pk_mul_f32 {p(h+2*i)}, {p(h+2*i)}, {p(GB+2*i)}" for i in range(4)])
        if hmode:
            a(f"v_fma_f32 v{S2}, v{S2}, v{K}, -v{MD}          ; variance")
            rnd(S2)
            a(f"v_add_f32 v{S2}, {EPS}, v{S2}")
            rnd(S2)
            a(f"v_sqrt_f32 v{S2}, v{S2}")
            rnd(S2)
            a(f"v_rcp_f32 v{S2}, v{S2}")
        else:
            a(f"v_fmaak_f32 v{S2}, v{S2}, v{K}, {EPS}")
            a(f"v_rsq_f32 v{S2}, v{S2}")
        a(f"v_readlane_b32 s36, v{S2}, 48")
        for i in range(4):
            a(f"v_pk_fma_f32 {p(h+2*i)}, {p(h+2*i)}, s[36:37], {p(BB+2*i)} op_sel_hi:[1,0,1]")
        if hmode: cvt_sub()
    for g in range(G):
        x, f = XR + 4*g, FR + 4*g
        after = 2 * (G - 1 - g)
        a(f"s_waitcnt vmcnt({after + (3 if g == 0 else 1)})")
        a(f"{MF} {q(h)}, {p(AA)}, {p(x)}, 0")
        a(f"{MF} {q(h+4)}, {p(AA)}, {p(x+2)}, 0")
        a(f"s_waitcnt vmcnt({after})")
        if stamps and g == G - 1: a("s_memrealtime s[28:29]")
        a(f"{MF} {q(h)}, {p(AI)}, {p(f)}, {q(h)}")
        a(f"{MF} {q(h+4)}, {p(AI)}, {p(f+2)}, {q(h+4)}")
        if g == 0:
            for src, dst in ((GRW, GB), (GRW + 4, BB)):
                for j in range(4):
                    a(f"v_lshlrev_b32 v{dst+2*j}, 16, v{src+j}")
                    a(f"v_and_b32 v{dst+2*j+1}, s22, v{src+j}")
        if g < G - 1 or not fall:
            a("s_call_b64 s[18:19], L_row")
            cvt(g)
        else:
            a("s_cmp_lg_u32 s17, 0")
    def epilogue():
        for _ in range(diag_delay): a("s_nop 15")
        a("s_barrier")
        for g in range(G):
            a(f"global_store_dwordx4 {ar(g)}, {q(PK if hmode and g == G - 1 else FR+4*g)}, s[14:15]{ao(g)} {sf}")
        if stamps:
            a("s_waitcnt vmcnt(0)\ns_memrealtime s[30:31]\ns_waitcnt lgkmcnt(0)")
            a("s_mov_b64 exec, -1")
            a("v_lshrrev_b32 v1, 6, v15")
            a(f"s_mul_i32 s3, s2, {block//64}")
            a("v_add_u32 v1, s3, v1\nv_lshlrev_b32 v1, 5, v1")
            for i in range(4): a(f"v_mov_b32 v{8+i}, s{24+i}")
            for i in range(4): a(f"v_mov_b32 v{4+i}, s{28+i}")
            a("s_mov_b64 exec, 1")
            a("global_store_dwordx4 v1, v[8:11], s[32:33]\nglobal_store_dwordx4 v1, v[4:7], s[32:33] offset:16")
        a("L_end:")
        a("s_endpgm")
    if fall:
        a("L_row:")
        a("s_nop 2")
        row_code()
        a("s_cbranch_scc1 L_ret")
        cvt(G - 1)
        epilogue()
        a("L_ret:")
        a("s_setpc_b64 s[18:19]")
    else:
        epilogue()
        a("L_row:")
        a("s_nop 2")
        row_code()
        a("s_setpc_b64 s[18:19]")
    body = a.finish()
    return wrap(body, grid, block, max(a.high("v"), minv), max(a.high("s"), 24), comments=comments, place=0x300)

def build(name):
    d = dict(l="n", s="c", z="0", v="136", f="1", m="0", x="0", j="0", w="8", D="0", h="0")
    for tok in name.split("_")[1:]: d[tok[0]] = tok[1:]
    fl = {"p": "", "n": "nt", "c": "sc1", "d": "sc0 sc1", "e": "sc1 nt", "f": "sc0 sc1 nt", "g": "sc0", "h": "sc0 nt"}
    return gen(lf=fl[d["l"]], sf=fl[d["s"]], stamps=d["z"] == "1", minv=int(d["v"]), fall=d["f"] == "1", gmajor=int(d["m"]), xcd=d["x"] == "1", adj=d["j"] == "1", wpb=int(d["w"]), diag_delay=int(d["D"]), hmode=d["h"] == "1")
if __name__ == "__main__":
    for n in sys.argv[1:]:
        open(f"../var/{n}.s", "w").write(build(n))
```

```python
import re
import gen_final as G
COMMENTS = """;
"""
s = G.gen(adj=True, hmode=True, comments=COMMENTS)
s = s.replace(".p2align 12\n", ".p2align 12                                 ; keeps the code in one 4 KB page (instruction prefetch stops at a page end)\n")
out = []
for line in s.split("\n"):
    m = re.match(r"^(    \S.*?)\s*;\s(.*)$", line)
    if m: line = m.group(1).ljust(76) + " ; " + m.group(2)
    out.append(line.rstrip())
open("../cdna_kernels/standalone__deepnorm__prompt.s", "w").write("\n".join(out))
```

```python
import sys, os
from common import *
from asmlib import Asm, Ins
MF = "v_mfma_f32_4x4x4_16b_bf16"
INV_N = "0x3b124925"; EPS = "0x3727c5ac"

COMMENTS = """;
"""

def gen(lf="nt", sf="sc1", stamps=False, minv=136, fall=True, comments=COMMENTS, gmajor=0, xcd=False, adj=False, wpb=8, diag_delay=0, hmode=False, xfirst=False):
    G = 4
    block, grid = 64 * wpb, 2048 // wpb
    a = Asm()
    p = lambda r: f"v[{r}:{r+1}]"
    q = lambda r: f"v[{r}:{r+3}]"
    COL, SH, K = 0, 1, 2
    AI, AA, T0, S1, S2 = 4, 6, 8, 10, 11
    T1 = 12
    MD = 14
    GB, BB, HB = 16, 24, 32
    XR = 40; FR = XR + 4 * G; GRW = FR + 4 * G
    OF = GRW + 8
    PK = GRW
    stride = wpb * 896 * (gmajor or 1)
    h = HB
    if stamps: a("s_memrealtime s[24:25]\ns_load_dwordx2 s[32:33], s[0:1], 56")
    a("s_load_dwordx8 s[4:11], s[0:1], 0        ; x f g b")
    a("s_load_dwordx4 s[12:15], s[0:1], 32")
    a(f"s_cmp_ge_u32 s2, {grid}")
    a("s_cbranch_scc1 L_end")
    if xcd:
        a("s_and_b32 s20, s2, 7")
        a("s_lshr_b32 s21, s2, 3")
        a("s_lshl_b32 s20, s20, 5")
        a("s_add_u32 s2, s20, s21")
    if gmajor and gmajor < grid:
        a(f"s_lshr_b32 s20, s2, {gmajor.bit_length()-1}")
        a(f"s_and_b32 s21, s2, {gmajor-1}")
        a(f"s_mul_i32 s20, s20, {32*896*gmajor}")
        a(f"s_mul_i32 s21, s21, {8*896}")
        a("s_add_u32 s3, s20, s21")
    else:
        a(f"s_mul_i32 s3, s2, {(wpb if gmajor else G * wpb)*896}")
    if stamps: a("v_mov_b32 v15, v0")
    a("v_lshrrev_b32 v1, 6, v0                  ; wave")
    a(f"v_and_b32 v{COL}, 63, v0")
    a(f"v_mul_u32_u24 v1, {896 * (G if adj else 1)}, v1")
    a(f"v_lshlrev_b32 v{COL}, 4, v{COL}")
    a(f"v_add3_u32 v{OF}, v1, v{COL}, s3")
    if not adj:
        for k in range(1, G): a(f"v_add_u32 v{OF+k}, {k*stride}, v{OF}")
    ar = (lambda g: f"v{OF}") if adj else (lambda g: f"v{OF+g}")
    ao = (lambda g: f" offset:{896*g}" if g else "") if adj else (lambda g: "")
    a("s_mov_b32 exec_hi, 0x00ffffff")
    a("s_waitcnt lgkmcnt(0)")
    if stamps: a("s_memrealtime s[26:27]")
    if xfirst:
        for g in range(G): a(f"global_load_dwordx4 {q(XR+4*g)}, {ar(g)}, s[4:5]{ao(g)} {lf}")
        a(f"global_load_dwordx4 {q(GRW)}, v{COL}, s[8:9]")
        a(f"global_load_dwordx4 {q(GRW+4)}, v{COL}, s[10:11]")
        a("s_load_dword s16, s[12:13], 0")
        for g in range(G):
            a("s_barrier")
            a(f"global_load_dwordx4 {q(FR+4*g)}, {ar(g)}, s[6:7]{ao(g)} {lf}")
    else:
        for g in range(G):
            a(f"global_load_dwordx4 {q(XR+4*g)}, {ar(g)}, s[4:5]{ao(g)} {lf}")
            a(f"global_load_dwordx4 {q(FR+4*g)}, {ar(g)}, s[6:7]{ao(g)} {lf}")
            if g == 0:
                a(f"global_load_dwordx4 {q(GRW)}, v{COL}, s[8:9]")
                a(f"global_load_dwordx4 {q(GRW+4)}, v{COL}, s[10:11]")
                a("s_load_dword s16, s[12:13], 0")
            if g < G - 1: a("s_barrier")
    a(f"v_and_b32 v{SH}, 48, v{COL}                      ; 16 * (lane & 3)")
    a("s_mov_b32 s20, 0x3f80")
    a("s_mov_b32 s21, 0")
    a("s_mov_b32 s17, 0")
    a(f"v_lshlrev_b64 {p(AI)}, v{SH}, s[20:21]")
    a(f"v_mov_b32 v{K}, {INV_N}                ; 1/448")
    a("s_mov_b32 s22, 0xffff0000")
    if fall: a("s_cmp_eq_u32 s17, 0")
    a("s_waitcnt lgkmcnt(0)")
    a("s_pack_ll_b32_b16 s16, s16, 0")
    a(f"v_lshlrev_b64 {p(AA)}, v{SH}, s[16:17]")
    def cvt(g):
        if hmode:
            if g < G - 1:
                a(f"v_mov_b64 {p(FR+4*g)}, {p(PK)}")
                a(f"v_mov_b64 {p(FR+4*g+2)}, {p(PK+2)}")
            return
        for i in range(4): a(f"v_cvt_pk_bf16_f32 v{FR+4*g+i}, v{h+2*i}, v{h+2*i+1}")
    def cvt_sub():
        for i in range(4): a(f"v_cvt_pk_bf16_f32 v{PK+i}, v{h+2*i}, v{h+2*i+1}")
    def rnd(v):
        a(f"v_cvt_pk_bf16_f32 v{v}, v{v}, v{v}")
        a(f"v_lshlrev_b32 v{v}, 16, v{v}")
    def row_code():
        if hmode:
            cvt_sub()
            a(f"{MF} {q(h)}, {p(AI)}, {p(PK)}, 0             ; h rounded to bf16, as the reference keeps it")
            a(f"{MF} {q(h+4)}, {p(AI)}, {p(PK+2)}, 0")
        a(f"v_pk_add_f32 {p(T0)}, {p(h)}, {p(h+2)}")
        a(f"v_pk_add_f32 {p(T1)}, {p(h+4)}, {p(h+6)}")
        a(f"v_pk_add_f32 {p(T0)}, {p(T0)}, {p(T1)}")
        a(f"v_add_f32 v{S1}, v{T0}, v{T0+1}")
        D = "row_mask:0xf bank_mask:0xf"
        def reduce(v, fill):
            for ctl in (f"quad_perm:[1,0,3,2] {D}", f"quad_perm:[2,3,0,1] {D}", f"row_half_mirror {D}",
                        f"row_mirror {D} bound_ctrl:1", "row_bcast:15 row_mask:0xa bank_mask:0xf",
                        "row_bcast:31 row_mask:0xc bank_mask:0xf"):
                for _ in range(2):
                    if fill: a(fill.pop(0))
                a(f"v_add_f32_dpp v{v}, v{v}, v{v} {ctl}")
        reduce(S1, [])
        if hmode:
            a(f"v_mul_f32 v{S1}, v{K}, v{S1}                 ; mean")
            a(f"v_cvt_pk_bf16_f32 v{MD}, v{S1}, v{S1}")
            a(f"v_lshlrev_b32 v{MD}, 16, v{MD}")
            a(f"v_sub_f32 v{S1}, v{S1}, v{MD}")
            a(f"v_readlane_b32 s36, v{MD}, 48")
            a(f"v_mul_f32 v{MD}, v{S1}, v{S1}")
            for i in range(4):
                a(f"v_pk_add_f32 {p(h+2*i)}, {p(h+2*i)}, s[36:37] op_sel_hi:[1,0] neg_lo:[0,1] neg_hi:[0,1]")
        else:
            a(f"v_readlane_b32 s36, v{S1}, 48")
            for i in range(4):
                a(f"v_pk_fma_f32 {p(h+2*i)}, s[36:37], {p(K)}, {p(h+2*i)} op_sel_hi:[0,0,1] neg_lo:[1,0,0] neg_hi:[1,0,0]")
        a(f"v_pk_mul_f32 {p(T0)}, {p(h)}, {p(h)}")
        for i in range(1, 4): a(f"v_pk_fma_f32 {p(T0)}, {p(h+2*i)}, {p(h+2*i)}, {p(T0)}")
        a(f"v_add_f32 v{S2}, v{T0}, v{T0+1}")
        reduce(S2, [f"v_pk_mul_f32 {p(h+2*i)}, {p(h+2*i)}, {p(GB+2*i)}" for i in range(4)])
        if hmode:
            a(f"v_fma_f32 v{S2}, v{S2}, v{K}, -v{MD}          ; variance")
            rnd(S2)
            a(f"v_add_f32 v{S2}, {EPS}, v{S2}")
            rnd(S2)
            a(f"v_sqrt_f32 v{S2}, v{S2}")
            rnd(S2)
            a(f"v_rcp_f32 v{S2}, v{S2}")
        else:
            a(f"v_fmaak_f32 v{S2}, v{S2}, v{K}, {EPS}")
            a(f"v_rsq_f32 v{S2}, v{S2}")
        a(f"v_readlane_b32 s36, v{S2}, 48")
        for i in range(4):
            a(f"v_pk_fma_f32 {p(h+2*i)}, {p(h+2*i)}, s[36:37], {p(BB+2*i)} op_sel_hi:[1,0,1]")
        if hmode: cvt_sub()
    for g in range(G):
        x, f = XR + 4*g, FR + 4*g
        after = (G - 1 - g) if xfirst else 2 * (G - 1 - g)
        if not xfirst: a(f"s_waitcnt vmcnt({after + (3 if g == 0 else 1)})")
        elif g == 0: a(f"s_waitcnt vmcnt({G})")
        a(f"{MF} {q(h)}, {p(AA)}, {p(x)}, 0")
        a(f"{MF} {q(h+4)}, {p(AA)}, {p(x+2)}, 0")
        a(f"s_waitcnt vmcnt({after})")
        if stamps and g == G - 1: a("s_memrealtime s[28:29]")
        a(f"{MF} {q(h)}, {p(AI)}, {p(f)}, {q(h)}")
        a(f"{MF} {q(h+4)}, {p(AI)}, {p(f+2)}, {q(h+4)}")
        if g == 0:
            for src, dst in ((GRW, GB), (GRW + 4, BB)):
                for j in range(4):
                    a(f"v_lshlrev_b32 v{dst+2*j}, 16, v{src+j}")
                    a(f"v_and_b32 v{dst+2*j+1}, s22, v{src+j}")
        if g < G - 1 or not fall:
            a("s_call_b64 s[18:19], L_row")
            cvt(g)
        else:
            a("s_cmp_lg_u32 s17, 0")
    def epilogue():
        for _ in range(diag_delay): a("s_nop 15")
        a("s_barrier")
        for g in range(G):
            a(f"global_store_dwordx4 {ar(g)}, {q(PK if hmode and g == G - 1 else FR+4*g)}, s[14:15]{ao(g)} {sf}")
        if stamps:
            a("s_waitcnt vmcnt(0)\ns_memrealtime s[30:31]\ns_waitcnt lgkmcnt(0)")
            a("s_mov_b64 exec, -1")
            a("v_lshrrev_b32 v1, 6, v15")
            a(f"s_mul_i32 s3, s2, {block//64}")
            a("v_add_u32 v1, s3, v1\nv_lshlrev_b32 v1, 5, v1")
            for i in range(4): a(f"v_mov_b32 v{8+i}, s{24+i}")
            for i in range(4): a(f"v_mov_b32 v{4+i}, s{28+i}")
            a("s_mov_b64 exec, 1")
            a("global_store_dwordx4 v1, v[8:11], s[32:33]\nglobal_store_dwordx4 v1, v[4:7], s[32:33] offset:16")
        a("L_end:")
        a("s_endpgm")
    if fall:
        a("L_row:")
        a("s_nop 2")
        row_code()
        a("s_cbranch_scc1 L_ret")
        cvt(G - 1)
        epilogue()
        a("L_ret:")
        a("s_setpc_b64 s[18:19]")
    else:
        epilogue()
        a("L_row:")
        a("s_nop 2")
        row_code()
        a("s_setpc_b64 s[18:19]")
    body = a.finish()
    return wrap(body, grid, block, max(a.high("v"), minv), max(a.high("s"), 24), comments=comments, place=0x300)

def build(name):
    d = dict(l="n", s="c", z="0", v="136", f="1", m="0", x="0", j="0", w="8", D="0", h="0", X="0")
    for tok in name.split("_")[1:]: d[tok[0]] = tok[1:]
    fl = {"p": "", "n": "nt", "c": "sc1", "d": "sc0 sc1", "e": "sc1 nt", "f": "sc0 sc1 nt", "g": "sc0", "h": "sc0 nt"}
    return gen(lf=fl[d["l"]], sf=fl[d["s"]], stamps=d["z"] == "1", minv=int(d["v"]), fall=d["f"] == "1", gmajor=int(d["m"]), xcd=d["x"] == "1", adj=d["j"] == "1", wpb=int(d["w"]), diag_delay=int(d["D"]), hmode=d["h"] == "1", xfirst=d["X"] == "1")
if __name__ == "__main__":
    for n in sys.argv[1:]:
        open(f"../var/{n}.s", "w").write(build(n))
```
